```python
import torch

def _softmax(x, axis=-1):
    return torch.softmax(x, dim=axis)
def _gelu(x):
    return torch.nn.functional.gelu(x, approximate="tanh")
def _silu(x):
    return torch.nn.functional.silu(x)
def _sigmoid(x):
    return torch.sigmoid(x)
def _layernorm(x, axis=-1, eps=1e-5):
    m = x.mean(dim=axis, keepdim=True)
    v = x.var(dim=axis, keepdim=True, unbiased=False)
    return (x - m) / torch.sqrt(v + eps)
def _scatter_add(tgt, idx, src, axis=0):
    return tgt.clone().index_add_(axis, idx, src)
def _segment_sum(src, seg, n):
    out = torch.zeros((n,) + src.shape[1:], dtype=src.dtype)
    return out.index_add_(0, seg, src)
def _pad(x, pw):
    flat = tuple(v for pair in reversed(pw) for v in pair)
    return torch.nn.functional.pad(x, flat)

kernel_name = 'interleave_layers__sliding_block__ssm_conv_h3__prompt'

def setup_inputs():

    _w = (lambda a: (lambda t: t.to(torch.bfloat16) if t.is_floating_point() else t)(torch.as_tensor(a)))
    def _A_setup():
        B, S, D = 1, 2048, 640
        return {
            "x": _w((lambda *s: torch.randn(*s, dtype=torch.bfloat16) * 0.05)(B, S, D)),
            "wqkv": _w((lambda *s: torch.randn(*s, dtype=torch.bfloat16) * 0.05)(D, 3 * D)),
            "wo": _w((lambda *s: torch.randn(*s, dtype=torch.bfloat16) * 0.05)(D, D)),
        }
    _A_in = _A_setup()

    def _B_setup():
        B, S, D = 1, 2048, 640
        ks = 4
        return {
            "q": _w((lambda *s: torch.randn(*s, dtype=torch.bfloat16) * 0.05)(B, S, D)),
            "k": _w((lambda *s: torch.randn(*s, dtype=torch.bfloat16) * 0.4)(B, S, D)),
            "v": _w((lambda *s: torch.randn(*s, dtype=torch.bfloat16) * 0.4)(B, S, D)),
            "shift_k": _w((lambda *s: torch.randn(*s, dtype=torch.bfloat16) * 0.4)(D, ks) * 0.5),
            "ssm_k": _w((lambda *s: torch.randn(*s, dtype=torch.bfloat16) * 0.8)(D, S) * (1.0 / S ** 0.5)),
            "ssm_D": _w((lambda *s: torch.randn(*s, dtype=torch.bfloat16) * 0.4)(D)),
        }
    _B_in = _B_setup()

    return {
        "A_x": _A_in["x"],
        "A_wqkv": _A_in["wqkv"],
        "A_wo": _A_in["wo"],
        "B_q": _B_in["q"],
        "B_k": _B_in["k"],
        "B_v": _B_in["v"],
        "B_shift_k": _B_in["shift_k"],
        "B_ssm_k": _B_in["ssm_k"],
        "B_ssm_D": _B_in["ssm_D"],
    }

def reference(A_x, A_wqkv, A_wo, B_q, B_k, B_v, B_shift_k, B_ssm_k, B_ssm_D):
    def _A_ref(x, wqkv, wo):
        B, S, D = x.shape
        H = 32; Dh = D // H; W = 256
        qkv = (lambda x, *d: x.permute(*d))((x @ wqkv).reshape(B, S, 3, H, Dh), 2, 0, 3, 1, 4)
        q, k, v = qkv[0], qkv[1], qkv[2]
        scores = torch.einsum("bhqd,bhkd->bhqk", q, k) * (Dh ** -0.5)
        idx = torch.arange(S)
        mask = (idx[:, None] - idx[None, :] >= 0) & (idx[:, None] - idx[None, :] < W)
        scores = torch.where(mask[None, None], scores, -1e9)
        p = _softmax(scores, axis=-1)
        o = torch.einsum("bhqk,bhkd->bhqd", p, v)
        return (lambda x, *d: x.permute(*d))(o, 0, 2, 1, 3).reshape(B, S, D) @ wo

    def _B_ref(q, k, v, shift_k, ssm_k, ssm_D):
        B, S, D = q.shape
        ks = shift_k.shape[-1]
        k_pad = _pad(k, ((0, 0), (ks - 1, 0), (0, 0)))
        k_shift = torch.zeros_like(k)
        for t in range(ks):
            k_shift = k_shift + k_pad[:, t:t + S, :] * shift_k[:, ks - 1 - t][None, None, :]
        kv = k_shift * v
        L = 2 * S
        kv_pad = _pad(kv, ((0, 0), (0, S), (0, 0)))
        kf_pad = _pad(ssm_k, ((0, 0), (0, S)))
        kv_f = (lambda x, axes=(-2,-1): torch.fft.rfft2(x.float(), dim=axes))(kv_pad[:, None, :, :], axes=(1, 2))
        kf_f = (lambda x, axes=(-2,-1): torch.fft.rfft2(x.float(), dim=axes))(kf_pad[:, None, :], axes=(1, 2))
        kf_f = (lambda x, *d: x.permute(*d))(kf_f, 1, 2, 0)
        y_f = kv_f * kf_f[None, :, :, :]
        y = (lambda x, s, axes=(-2,-1): torch.fft.irfft2(x, s=s, dim=axes).to(torch.bfloat16))(y_f, (1, L), axes=(1, 2))[:, 0, :S, :]
        y = y + kv * ssm_D[None, None, :]
        return q * y

    x = A_x
    x = x + _A_ref(_layernorm(x, axis=-1), A_wqkv, A_wo)
    x = x + _B_ref(_layernorm(x, axis=-1), B_k, B_v, B_shift_k, B_ssm_k, B_ssm_D)
    x = x + _A_ref(_layernorm(x, axis=-1), A_wqkv, A_wo)
    x = x + _B_ref(_layernorm(x, axis=-1), B_k, B_v, B_shift_k, B_ssm_k, B_ssm_D)
    return x
```

```python
import re


class Asm:
    def __init__(self):
        self.lines = []
        self._lab = 0

    def __call__(self, s=""):
        for ln in s.strip("\n").split("\n"):
            ln = ln.strip()
            if not ln:
                continue
            if ln.endswith(":") or ln.startswith(".") or ln.startswith(";"):
                self.lines.append(ln)
            else:
                self.lines.append("    " + ln)

    def raw(self, s):
        self.lines.append(s)

    def label(self, base="L"):
        self._lab += 1
        return f"{base}_{self._lab}"

    def text(self):
        return "\n".join(self.lines) + "\n"


def v(i, n=1):
    return f"v{i}" if n == 1 else f"v[{i}:{i+n-1}]"


def a(i, n=1):
    return f"a{i}" if n == 1 else f"a[{i}:{i+n-1}]"


def s(i, n=1):
    return f"s{i}" if n == 1 else f"s[{i}:{i+n-1}]"


def kernel_header(name):
    return (f".text\n.globl {name}\n.p2align 8\n.type {name},@function\n{name}:\n")


def kernel_desc(name, vgpr, accum, sgpr=102, extra=""):
    return (f".section .rodata,\"a\"\n.p2align 6\n.amdhsa_kernel {name}\n"
            f"  .amdhsa_next_free_vgpr {vgpr}\n  .amdhsa_next_free_sgpr {sgpr}\n"
            f"  .amdhsa_accum_offset {accum}\n  .amdhsa_group_segment_fixed_size 0\n"
            f"  .amdhsa_kernarg_size 96\n  .amdhsa_user_sgpr_count 2\n"
            f"  .amdhsa_user_sgpr_kernarg_segment_ptr 1\n  .amdhsa_system_sgpr_workgroup_id_x 1\n"
            f"{extra}.end_amdhsa_kernel\n")
```

```python
import re

REG = re.compile(r"^-?\|?(?P<f>[vas])(?:(?P<n>\d+)|\[(?P<lo>\d+):(?P<hi>\d+)\])\|?$")
TRANS = ("v_exp_f32", "v_log_f32", "v_rcp_f32", "v_rsq_f32", "v_sqrt_f32", "v_sin_f32", "v_cos_f32", "v_rcp_iflag_f32")


def regs(tok):
    tok = tok.strip()
    if tok in ("vcc", "vcc_lo", "vcc_hi"):
        return {("s", 106), ("s", 107)} if tok == "vcc" else {("s", 106 if tok == "vcc_lo" else 107)}
    if tok == "exec":
        return {("s", 126), ("s", 127)}
    if tok == "m0":
        return {("s", 124)}
    m = REG.match(tok)
    if not m:
        return set()
    f = m.group("f")
    if m.group("n") is not None:
        return {(f, int(m.group("n")))}
    return {(f, i) for i in range(int(m.group("lo")), int(m.group("hi")) + 1)}


def split_ops(rest):
    ops, depth, cur = [], 0, ""
    for ch in rest + ",":
        if ch == "[":
            depth += 1
        if ch == "]":
            depth -= 1
        if ch == "," and depth == 0:
            ops.append(cur.strip())
            cur = ""
        else:
            cur += ch
    out, mods = [], []
    for o in ops:
        parts = o.split()
        if parts:
            out.append(parts[0])
            mods += parts[1:]
    return out, mods


class I:
    __slots__ = ("text", "mn", "ops", "mods", "kind", "wr", "rd", "srcc", "srca", "passes", "states", "label", "target", "store_data", "async_wr")

    def __init__(self, text):
        self.text = text
        t = text.split(";")[0].strip()
        self.label = None
        self.target = None
        self.kind = "other"
        self.wr, self.rd, self.srcc, self.srca = set(), set(), set(), set()
        self.store_data, self.async_wr = set(), set()
        self.passes = 0
        self.states = 1
        self.mn = ""
        self.ops, self.mods = [], []
        if not t or t.startswith("."):
            self.kind = "directive"
            self.states = 0
            return
        if t.endswith(":"):
            self.kind = "label"
            self.label = t[:-1]
            self.states = 0
            return
        parts = t.split(None, 1)
        self.mn = mn = parts[0]
        rest = parts[1] if len(parts) > 1 else ""
        self.ops, self.mods = split_ops(rest)
        ops = self.ops
        R = [regs(o) for o in ops]
        base = re.sub(r"_e(32|64)$|_dpp$|_sdwa$", "", mn)
        if mn == "s_nop":
            self.kind = "nop"
            self.states = int(ops[0], 0) + 1
        elif mn.startswith("s_cbranch") or mn == "s_branch":
            self.kind = "branch"
            self.target = ops[0]
        elif mn.startswith("v_mfma"):
            self.kind = "mfma"
            self.wr = R[0]
            self.srca = R[1] | R[2]
            self.srcc = R[3] if len(R) > 3 else set()
            self.rd = self.srca | self.srcc
            self.passes = 8 if "32x32" in mn else 4
        elif mn.startswith("v_"):
            self.kind = "valu"
            if base.startswith("v_cmp"):
                if len(ops) == 3:
                    self.wr = R[0]
                    self.rd = R[1] | R[2]
                else:
                    self.wr = regs("vcc")
                    self.rd = set().union(*R)
            elif base.startswith("v_permlane") and "swap" in base:
                self.wr = R[0] | R[1]
                self.rd = R[0] | R[1]
            elif base in ("v_add_co_u32", "v_sub_co_u32", "v_addc_co_u32", "v_subb_co_u32", "v_subrev_co_u32"):
                self.wr = R[0] | R[1]
                self.rd = set().union(*R[2:])
            else:
                self.wr = R[0]
                self.rd = set().union(*R[1:]) if len(R) > 1 else set()
                if base in ("v_fmac_f32", "v_pk_fmac_f16", "v_dot2c_f32_bf16", "v_writelane_b32", "v_mac_f32") or "op_sel" in rest or base.startswith("v_cvt_scalef"):
                    self.rd |= R[0]
                if base == "v_cndmask_b32" and len(ops) == 3:
                    self.rd |= regs("vcc")
                if base in ("v_accvgpr_write_b32",):
                    pass
        elif mn.startswith("ds_"):
            self.kind = "ds"
            if mn.startswith("ds_read") or mn.startswith("ds_bpermute") or mn.startswith("ds_permute") or mn.startswith("ds_swizzle"):
                self.async_wr = R[0]
                self.rd = set().union(*R[1:]) if len(R) > 1 else set()
            else:
                self.rd = set().union(*R)
        elif mn.startswith("buffer_") or mn.startswith("global_") or mn.startswith("flat_"):
            self.kind = "vmem"
            lds = "lds" in self.mods or "_lds_" in mn
            if mn.startswith("buffer_wbl2") or mn.startswith("buffer_inv"):
                pass
            elif "load" in mn and not lds:
                self.async_wr = R[0]
                self.rd = set().union(*R[1:])
            elif "store" in mn:
                if mn.startswith("buffer_"):
                    data = R[0]
                else:
                    data = R[1]
                self.rd = set().union(*R)
                if "x3" in mn or "x4" in mn:
                    self.store_data = data
            elif "atomic" in mn:
                self.rd = set().union(*R)
                if "sc0" in self.mods:
                    self.async_wr = R[0]
            else:
                self.rd = set().union(*R)
            if lds:
                self.rd |= regs("m0")
                self.kind = "vmem_lds"
        elif mn.startswith("s_"):
            self.kind = "salu"
            if mn.startswith("s_cmp") or mn in ("s_waitcnt", "s_barrier", "s_endpgm", "s_sleep", "s_setprio", "s_sethalt"):
                self.rd = set().union(*R) if R else set()
            elif mn.startswith("s_load") or mn.startswith("s_buffer_load") or mn in ("s_memtime", "s_memrealtime"):
                self.async_wr = R[0]
                self.rd = set().union(*R[1:]) if len(R) > 1 else set()
            else:
                self.wr = R[0] if R else set()
                self.rd = set().union(*R[1:]) if len(R) > 1 else set()
                if "saveexec" in mn:
                    self.wr |= regs("exec")


def vonly(s):
    return {r for r in s if r[0] in "va"}


def sonly(s):
    return {r for r in s if r[0] == "s"}


def need(p, c):
    n = 0
    ck = c.kind
    if p.kind == "valu":
        pw = vonly(p.wr)
        ps = sonly(p.wr)
        if ck == "mfma" and pw & c.rd:
            n = max(n, 2)
        if ck == "valu":
            base = c.mn
            if base.startswith("v_readlane") or base.startswith("v_readfirstlane"):
                if pw & c.rd:
                    n = max(n, 1)
                if base.startswith("v_readlane") and ps & c.rd:
                    n = max(n, 4)
            if base.startswith("v_writelane") and ps & c.rd:
                n = max(n, 4)
            if base.startswith("v_permlane") and pw & c.rd:
                n = max(n, 2)
            if ("dpp" in base or any(m.startswith(("row_", "quad_perm", "wave_")) for m in c.mods)) and pw & c.rd:
                n = max(n, 2)
            if ps & c.rd:
                n = max(n, 2)
            if p.mn.replace("_e32", "").replace("_e64", "") in TRANS and pw & c.rd:
                n = max(n, 1)
            if ("op_sel" in p.text or "sdwa" in p.mn) and pw & (c.rd | c.wr):
                n = max(n, 1)
        if ck in ("vmem", "vmem_lds") and ps & c.rd:
            n = max(n, 5)
        if ck == "salu" and ps & c.rd:
            n = max(n, 1)
    if p.kind == "mfma":
        big = {4: 8, 8: 12}[p.passes]
        if ck == "mfma":
            if p.wr & c.srca:
                n = max(n, big)
            if p.wr & c.srcc:
                if not (p.wr == c.srcc and p.passes == c.passes):
                    n = max(n, {4: 6, 8: 10}[p.passes])
            if (p.wr & c.wr) and not (p.wr == c.wr and p.wr == c.srcc and p.passes == c.passes):
                if not (p.wr & c.srcc):
                    n = max(n, {4: 6, 8: 10}[p.passes])
        elif ck == "valu":
            if p.wr & (c.rd | c.wr):
                n = max(n, big)
            if p.srcc & c.wr:
                n = max(n, {4: 3, 8: 7}[p.passes])
        elif ck in ("ds", "vmem", "vmem_lds"):
            if p.wr & (c.rd | c.async_wr):
                n = max(n, big)
            if p.srcc & c.async_wr and not (p.srcc <= p.wr):
                n = max(n, {4: 3, 8: 7}[p.passes])
    if p.kind == "salu" and ("s", 124) in p.wr and ck == "vmem_lds":
        n = max(n, 1)
    if p.store_data:
        if ck == "valu" and p.store_data & c.wr:
            n = max(n, 2)
        elif ck in ("mfma",) and p.store_data & c.wr:
            n = max(n, 2)
        elif p.store_data & c.async_wr:
            n = max(n, 1)
    return n


MAXD = 13


def run(lines):
    ins = [I(l) for l in lines]
    prev = {}
    for k, x in enumerate(ins):
        prev[id(x)] = ins[k - 1] if k else None
    labels = {x.label: x for x in ins if x.kind == "label"}
    sources = {}
    for x in ins:
        if x.kind == "branch" and x.target in labels:
            sources.setdefault(x.target, []).append(x)
    out = []
    total = 0
    for c in ins:
        if c.kind not in ("directive", "label", "nop", "branch"):
            worst = 0
            stack = [(prev[id(c)], 0, False)]
            seen = {}
            while stack:
                p, d, via = stack.pop()
                while p is not None and d < MAXD:
                    if seen.get(id(p), 99) <= d:
                        break
                    seen[id(p)] = d
                    if p.mn in ("s_branch", "s_endpgm") and not via:
                        break
                    via = False
                    if p.kind == "label":
                        for b in sources.get(p.label, []):
                            stack.append((b, d, True))
                    elif p.kind not in ("directive", "nop"):
                        r = need(p, c)
                        if r > d:
                            worst = max(worst, r - d)
                    d += p.states
                    p = prev[id(p)]
            if worst:
                n = I(f"    s_nop {worst-1}")
                prev[id(n)] = prev[id(c)]
                prev[id(c)] = n
                out.append(n)
                total += 1
        out.append(c)
    return [x.text for x in out], total
```

```python
from asmlib import Asm, kernel_header, kernel_desc
import hazard

NAME = "interleave_layers__sliding_block__ssm_conv_h3__prompt_kernel"

FLAGL_FAST = 0x0
FLAGL_SLOW = 0x1000
FLAGY = 0x2000
FLAGH = 0x4000
XSTAT = 0x20000
XF = 0x100000
KVT = 0x400000
OF = 0x700000
YT = 0xA00000
HALO = 0x1000000
DBGA = 0x2000000
GSZ = 327680
WS_BYTES = 268435456

L_KOWN = 0
L_VOWN = 12288
L_KHALO = 24576
L_CS = 49152
L_CSP = 49664
L_CONV = 98304
CONV_SZ = 12928
L_WO = 61440
L_WST = 0
WST_SZ = 12288
L_XT0 = 0
L_KT = 24576
L_VT = 36864
LDS_BYTES = 163840

S_WS = 4
S_A = 8
S_B = 12
S_C = 16
P_X, P_WQKV, P_WO, P_BQ = 20, 22, 24, 26
P_BK, P_BV, P_SHK, P_SSMK, P_SSMD, P_OUT, P_DBG, P_WS = 28, 30, 32, 34, 36, 38, 40, 42
S_G, S_R, S_W, S_RG, S_CG, S_LAYER, S_FAST, S_GOFF = 44, 45, 46, 47, 48, 49, 50, 51
S_T0 = 52
S_FLOFF = 64
S_4096 = 65
S_SPIN = 66
S_U0 = 68

V_TID = 0
V_LANE = 1
V_XT = 2
V_YT = 12
V_L16 = 22
V_P = 23


def wfrag(f):
    return f"a[{4*f}:{4*f+3}]" if f < 64 else f"v[{192+4*(f-64)}:{192+4*(f-64)+3}]"


def wfrag_half(f, hh):
    if f < 64:
        return f"a[{4*f+2*hh}:{4*f+2*hh+1}]"
    b = 192 + 4 * (f - 64) + 2 * hh
    return f"v[{b}:{b+1}]"


def vr(i, n=1):
    return f"v{i}" if n == 1 else f"v[{i}:{i+n-1}]"


def sr(i, n=1):
    return f"s{i}" if n == 1 else f"s[{i}:{i+n-1}]"


class G(Asm):
    def __init__(self):
        super().__init__()
        self.vm = []
        self.lg = []

    def vmem(self, text, tag=None):
        self(text)
        self.vm.append(tag)

    def vm_wait(self, tag):
        idx = max(i for i, t in enumerate(self.vm) if t == tag)
        n = len(self.vm) - 1 - idx
        assert n <= 63, n
        self(f"s_waitcnt vmcnt({n})")
        self.vm = self.vm[idx + 1:]

    def vm_wait_if(self, tag):
        if tag in self.vm:
            self.vm_wait(tag)

    def vm_all(self):
        self("s_waitcnt vmcnt(0)")
        self.vm = []

    def lds(self, text, tag=None):
        self(text)
        self.lg.append(tag)

    def lg_wait(self, tag):
        idx = max(i for i, t in enumerate(self.lg) if t == tag)
        n = len(self.lg) - 1 - idx
        n = min(n, 15)
        self(f"s_waitcnt lgkmcnt({n})")
        self.lg = self.lg[len(self.lg) - n:] if n else []

    def lg_wait_if(self, tag):
        if tag in self.lg:
            self.lg_wait(tag)

    def lg_all(self):
        self("s_waitcnt lgkmcnt(0)")
        self.lg = []

    def srd(self, dst, ptr, nbytes):
        self(f"s_mov_b32 {sr(dst)}, {sr(ptr)}")
        self(f"s_and_b32 {sr(dst+1)}, {sr(ptr+1)}, 0xffff")
        self(f"s_mov_b32 {sr(dst+2)}, {nbytes}")
        self(f"s_mov_b32 {sr(dst+3)}, 0x20000")

    def srd_off(self, dst, ptr, off_sreg, nbytes):
        self(f"s_add_u32 {sr(dst)}, {sr(ptr)}, {sr(off_sreg)}")
        self(f"s_addc_u32 {sr(dst+1)}, {sr(ptr+1)}, 0")
        self(f"s_and_b32 {sr(dst+1)}, {sr(dst+1)}, 0xffff")
        self(f"s_mov_b32 {sr(dst+2)}, {nbytes}")
        self(f"s_mov_b32 {sr(dst+3)}, 0x20000")
```

```python
from mk_base import *

L_XR = 61440
V_ACC = 64
V_CS = 128
V_XB = 160
V_ONES = 176
V_XD0, V_XD1 = 23, 24
V_WD = 25
V_XRA = 26
V_WR0, V_WR1 = 34, 35
V_T = 36
QSCALE = (20 ** -0.5) * 1.4426950408889634


def f32bits(x):
    import struct
    return struct.unpack("<I", struct.pack("<f", x))[0]


def div10_offset(A, vdst, vc, vtmp):
    A(f"v_mul_u32_u24 {vr(vtmp)}, 6554, {vr(vc)}")
    A(f"v_lshrrev_b32 {vr(vtmp)}, 16, {vr(vtmp)}")
    A(f"v_mul_u32_u24 {vr(vtmp)}, 1120, {vr(vtmp)}")
    A(f"v_lshl_add_u32 {vr(vdst)}, {vr(vc)}, 4, {vr(vtmp)}")


def reduce_G(A, regs, t0, t1):
    for r in regs:
        A(f"v_mov_b32 {vr(t0)}, {vr(r)}")
        A(f"v_permlane16_swap_b32 {vr(t0)}, {vr(r)}")
        A(f"v_add_f32 {vr(r)}, {vr(r)}, {vr(t0)}")
        A(f"v_mov_b32 {vr(t0)}, {vr(r)}")
        A(f"v_permlane32_swap_b32 {vr(t0)}, {vr(r)}")
        A(f"v_add_f32 {vr(r)}, {vr(r)}, {vr(t0)}")


def tile_stats(A, vsum, vsq, tmp):
    A(f"v_mov_b32 {vr(vsum)}, 0")
    A(f"v_mov_b32 {vr(vsq)}, 0")
    for j in range(10):
        A(f"v_lshlrev_b32 {vr(tmp)}, 16, {vr(V_XT+j)}")
        A(f"v_and_b32 {vr(tmp+1)}, 0xffff0000, {vr(V_XT+j)}")
        A(f"v_add_f32 {vr(vsum)}, {vr(vsum)}, {vr(tmp)}")
        A(f"v_fmac_f32 {vr(vsq)}, {vr(tmp)}, {vr(tmp)}")
        A(f"v_add_f32 {vr(vsum)}, {vr(vsum)}, {vr(tmp+1)}")
        A(f"v_fmac_f32 {vr(vsq)}, {vr(tmp+1)}, {vr(tmp+1)}")
    reduce_G(A, [vsum, vsq], tmp, tmp + 1)


def store_xstat(A, stage, vsum, vtmp, tag, sc1=False, by_layer=False):
    A(f"s_lshl_b32 {sr(S_T0)}, {sr(S_G)}, 14")
    A(f"s_lshl_b32 {sr(S_T0+1)}, {sr(S_RG)}, 12")
    A(f"s_add_u32 {sr(S_T0)}, {sr(S_T0)}, {sr(S_T0+1)}")
    A(f"s_lshl_b32 {sr(S_T0+1)}, {sr(S_W)}, 10")
    A(f"s_add_u32 {sr(S_T0)}, {sr(S_T0)}, {sr(S_T0+1)}")
    A(f"s_lshl_b32 {sr(S_T0+1)}, {sr(S_CG)}, 3")
    A(f"s_add_u32 {sr(S_T0)}, {sr(S_T0)}, {sr(S_T0+1)}")
    A(f"s_add_u32 {sr(S_T0)}, {sr(S_T0)}, {XSTAT + stage*131072}")
    if by_layer:
        A(f"s_lshl_b32 {sr(S_T0+1)}, {sr(S_LAYER)}, 18")
        A(f"s_add_u32 {sr(S_T0)}, {sr(S_T0)}, {sr(S_T0+1)}")
    A(f"v_lshlrev_b32 {vr(vtmp)}, 6, {vr(V_LANE)}")
    A("s_mov_b64 exec, 0xffff")
    A.vmem(f"buffer_store_dwordx2 {vr(vsum,2)}, {vr(vtmp)}, {sr(S_WS,4)}, {sr(S_T0)} offen" + (" sc1" if sc1 else ""), tag)
    A("s_mov_b64 exec, -1")


def signal_local_store(A, p, vtmp):
    lab = A.label("Lsig")
    A(f"v_mov_b32 {vr(vtmp)}, {p}")
    A(f"s_lshl_b32 {sr(S_T0)}, {sr(S_R)}, 2")
    A(f"s_add_u32 {sr(S_T0)}, {sr(S_T0)}, {sr(S_FLOFF)}")
    A(f"v_mov_b32 {vr(vtmp+1)}, 0")
    A("s_mov_b64 exec, 1")
    A(f"s_cmp_eq_u32 {sr(S_FAST)}, 1")
    A(f"s_cbranch_scc0 {lab}_slow")
    A(f"buffer_store_dword {vr(vtmp)}, {vr(vtmp+1)}, {sr(S_WS,4)}, {sr(S_T0)} offen")
    A(f"s_branch {lab}_done")
    A(f"{lab}_slow:")
    A("buffer_wbl2 sc1")
    A("s_waitcnt vmcnt(0)")
    A(f"buffer_store_dword {vr(vtmp)}, {vr(vtmp+1)}, {sr(S_WS,4)}, {sr(S_T0)} offen sc1")
    A(f"{lab}_done:")
    A("s_mov_b64 exec, -1")


def spin_guard(A, lab):
    A(f"s_sub_u32 {sr(S_SPIN)}, {sr(S_SPIN)}, 1")
    A(f"s_cmp_lg_u32 {sr(S_SPIN)}, 0")
    A(f"s_cbranch_scc1 {lab}")


def wait_local(A, p, vtmp, rg_only=False):
    lab = A.label("Lwl")
    A(f"v_and_b32 {vr(vtmp+1)}, 31, {vr(V_LANE)}")
    A(f"v_lshlrev_b32 {vr(vtmp+1)}, 2, {vr(vtmp+1)}")
    if rg_only:
        A(f"s_lshl_b32 {sr(S_T0)}, {sr(S_RG)}, 3")
        A(f"s_lshl_b32 {sr(S_T0+1)}, 0xff, {sr(S_T0)}")
    else:
        A(f"s_mov_b32 {sr(S_T0+1)}, -1")
    A(f"s_mov_b32 {sr(S_SPIN)}, 0x40000")
    A(f"{lab}:")
    A(f"buffer_load_dword {vr(vtmp)}, {vr(vtmp+1)}, {sr(S_WS,4)}, {sr(S_FLOFF)} offen sc1")
    A("s_waitcnt vmcnt(0)")
    A(f"v_cmp_le_u32 vcc, {p}, {vr(vtmp)}")
    A(f"s_and_b32 {sr(S_T0)}, vcc_lo, {sr(S_T0+1)}")
    A(f"s_cmp_eq_u32 {sr(S_T0)}, {sr(S_T0+1)}")
    A(f"s_cbranch_scc1 {lab}_ok")
    spin_guard(A, lab)
    A(f"{lab}_ok:")
    A(f"s_cmp_eq_u32 {sr(S_FAST)}, 1")
    A(f"s_cbranch_scc1 {lab}_fin")
    A("buffer_inv sc1")
    A("s_waitcnt vmcnt(0)")
    A(f"{lab}_fin:")
    A.vm = []


def wait_arrival(A, vtmp):
    lab = A.label("Larr")
    A.srd(S_A, P_DBG, 256)
    A(f"v_and_b32 {vr(vtmp+2)}, 7, {vr(V_LANE)}")
    A(f"v_lshlrev_b32 {vr(vtmp+2)}, 3, {vr(vtmp+2)}")
    A(f"s_mov_b32 {sr(S_SPIN)}, 0x40000")
    A(f"s_mov_b32 {sr(S_T0+2)}, 0x01010101")
    A(f"{lab}:")
    A(f"buffer_load_dwordx2 {vr(vtmp,2)}, {vr(vtmp+2)}, {sr(S_A,4)}, 0 offen sc1")
    A("s_waitcnt vmcnt(0)")
    A(f"v_add_u32 {vr(vtmp+3)}, {vr(vtmp)}, {vr(vtmp+1)}")
    A(f"v_mul_lo_u32 {vr(vtmp+3)}, {vr(vtmp+3)}, {sr(S_T0+2)}")
    A(f"v_lshrrev_b32 {vr(vtmp+3)}, 24, {vr(vtmp+3)}")
    A(f"v_cmp_eq_u32 vcc, 32, {vr(vtmp+3)}")
    A(f"s_and_b32 {sr(S_T0)}, vcc_lo, 0xff")
    A(f"s_cmp_eq_u32 {sr(S_T0)}, 0xff")
    A(f"s_cbranch_scc1 {lab}_ok")
    spin_guard(A, lab)
    A(f"{lab}_ok:")
    A(f"v_readlane_b32 {sr(S_T0)}, {vr(vtmp)}, {sr(S_G)}")
    A(f"v_readlane_b32 {sr(S_T0+1)}, {vr(vtmp+1)}, {sr(S_G)}")
    A(f"s_bcnt1_i32_b32 {sr(S_T0)}, {sr(S_T0)}")
    A(f"s_bcnt1_i32_b32 {sr(S_T0+1)}, {sr(S_T0+1)}")
    A(f"s_add_u32 {sr(S_T0)}, {sr(S_T0)}, {sr(S_T0+1)}")
    A(f"s_cmp_eq_u32 {sr(S_T0)}, 1")
    A(f"s_cselect_b32 {sr(S_FAST)}, 1, 0")
    if FORCE_SLOW:
        A(f"s_mov_b32 {sr(S_FAST)}, 0")
    A(f"s_lshl_b32 {sr(S_T0)}, {sr(S_G)}, 8")
    A(f"s_cmp_eq_u32 {sr(S_FAST)}, 1")
    A(f"s_cselect_b32 {sr(S_FLOFF)}, {FLAGL_FAST}, {FLAGL_SLOW}")
    A(f"s_add_u32 {sr(S_FLOFF)}, {sr(S_FLOFF)}, {sr(S_T0)}")
    A.vm = []


FORCE_SLOW = False


def entry(A):
    A(f"s_cmp_ge_u32 s2, 256")
    A("s_cbranch_scc1 L_end")
    A("s_load_dwordx8 s[20:27], s[0:1], 0")
    A("s_load_dwordx16 s[28:43], s[0:1], 32")
    A(f"v_and_b32 {vr(V_LANE)}, 63, v0")
    A(f"v_lshrrev_b32 {vr(V_T)}, 6, v0")
    A(f"v_readfirstlane_b32 {sr(S_W)}, {vr(V_T)}")
    A(f"s_and_b32 {sr(S_G)}, s2, 7")
    A(f"s_lshr_b32 {sr(S_R)}, s2, 3")
    A(f"s_lshr_b32 {sr(S_RG)}, {sr(S_R)}, 3")
    A(f"s_and_b32 {sr(S_CG)}, {sr(S_R)}, 7")
    A(f"s_mul_i32 {sr(S_GOFF)}, {sr(S_G)}, {GSZ}")
    A(f"s_mov_b32 {sr(S_LAYER)}, 0")
    A(f"s_mov_b32 {sr(S_FAST)}, 0")
    A(f"s_mov_b32 {sr(S_FLOFF)}, 0")
    A(f"s_mov_b32 {sr(S_4096)}, 4096")
    A(f"v_lshlrev_b32 {vr(V_L16)}, 4, {vr(V_LANE)}")
    A(f"s_getreg_b32 {sr(S_U0)}, hwreg(HW_REG_XCC_ID)")
    A("s_waitcnt lgkmcnt(0)")
    A.srd(S_WS, P_WS, WS_BYTES)


def p0_p1(A):
    T = V_T
    A(f"s_cmp_eq_u32 {sr(S_W)}, 3")
    A("s_cbranch_scc0 L_p0_noflag")
    A(f"v_mov_b32 {vr(T)}, 0")
    A(f"v_mov_b32 {vr(T+1)}, 0")
    A(f"s_lshl_b32 {sr(S_T0)}, {sr(S_G)}, 8")
    A(f"s_lshl_b32 {sr(S_T0+1)}, {sr(S_R)}, 2")
    A(f"s_add_u32 {sr(S_T0)}, {sr(S_T0)}, {sr(S_T0+1)}")
    A(f"s_add_u32 {sr(S_T0+1)}, {sr(S_T0)}, {FLAGL_SLOW}")
    A(f"v_writelane_b32 {vr(T+1)}, {sr(S_T0+1)}, 0")
    A(f"s_add_u32 {sr(S_T0+1)}, {sr(S_T0)}, {FLAGY}")
    A(f"v_writelane_b32 {vr(T+1)}, {sr(S_T0+1)}, 1")
    A(f"s_lshl_b32 {sr(S_T0+2)}, {sr(S_G)}, 5")
    A(f"s_add_u32 {sr(S_T0+2)}, {sr(S_T0+2)}, {sr(S_R)}")
    A(f"s_lshl_b32 {sr(S_T0+2)}, {sr(S_T0+2)}, 7")
    A(f"s_add_u32 {sr(S_T0+1)}, {sr(S_T0+2)}, {FLAGH}")
    A(f"v_writelane_b32 {vr(T+1)}, {sr(S_T0+1)}, 2")
    A(f"s_add_u32 {sr(S_T0+1)}, {sr(S_T0+2)}, {FLAGH + 32768}")
    A(f"v_writelane_b32 {vr(T+1)}, {sr(S_T0+1)}, 3")
    A(f"v_mov_b32 {vr(T+2)}, 0")
    A(f"v_mov_b32 {vr(T+3)}, 0")
    A(f"v_mov_b32 {vr(T+4)}, 0")
    A(f"v_mov_b32 {vr(T+5)}, 0")
    A("s_mov_b64 exec, 0x3")
    A(f"buffer_store_dword {vr(T)}, {vr(T+1)}, {sr(S_WS,4)}, 0 offen sc1")
    A("s_mov_b64 exec, 0xc")
    A(f"buffer_store_dwordx4 {vr(T+2,4)}, {vr(T+1)}, {sr(S_WS,4)}, 0 offen sc1")
    A("s_mov_b64 exec, 1")
    A(f"buffer_store_dword {vr(T)}, {vr(T)}, {sr(S_WS,4)}, {sr(S_T0)} offen")
    A("s_mov_b64 exec, -1")
    A("L_p0_noflag:")
    conv_channel_setup(A)
    A.srd(S_A, P_X, 2621440)
    A.srd(S_B, P_WQKV, 2457600)
    XT0 = L_XR + 2 * 32768
    A(f"s_mul_i32 {sr(S_T0)}, {sr(S_W)}, 192")
    A(f"v_add_u32 {vr(T)}, {sr(S_T0)}, {vr(V_LANE)}")
    A(f"s_lshl_b32 {sr(S_T0+1)}, {sr(S_G)}, 8")
    A(f"s_lshl_b32 {sr(S_T0+2)}, {sr(S_RG)}, 6")
    A(f"s_add_u32 {sr(S_T0+1)}, {sr(S_T0+1)}, {sr(S_T0+2)}")
    A(f"s_mul_i32 {sr(S_T0+1)}, {sr(S_T0+1)}, 1280")
    A(f"s_mul_i32 {sr(S_T0+2)}, {sr(S_CG)}, 160")
    A(f"s_add_u32 {sr(S_T0+1)}, {sr(S_T0+1)}, {sr(S_T0+2)}")
    A(f"s_mul_i32 {sr(S_T0+3)}, {sr(S_W)}, 3072")
    for j in range(3):
        div10_offset(A, T + 2, T, T + 1)
        A(f"s_add_u32 m0, {sr(S_T0+3)}, {XT0 + j*1024}")
        A.vmem(f"buffer_load_dwordx4 {vr(T+2)}, {sr(S_A,4)}, {sr(S_T0+1)} offen lds", "xt0")
        if j < 2:
            A(f"v_add_u32 {vr(T)}, 64, {vr(T)}")
    A(f"""
    v_lshrrev_b32 {vr(T)}, 3, {vr(V_LANE)}
    v_and_b32 {vr(T+1)}, 7, {vr(V_LANE)}
    v_lshrrev_b32 {vr(T+2)}, 4, {vr(V_LANE)}
    v_xor_b32 {vr(T+1)}, {vr(T+1)}, {vr(T+2)}
    v_lshlrev_b32 {vr(T+1)}, 4, {vr(T+1)}
    v_mul_u32_u24 {vr(T)}, 1280, {vr(T)}
    v_add_u32 {vr(V_XD0)}, {vr(T)}, {vr(T+1)}
    v_xor_b32 {vr(V_XD1)}, 64, {vr(V_XD0)}
    v_lshrrev_b32 {vr(T)}, 2, {vr(V_LANE)}
    v_mul_u32_u24 {vr(T)}, 3840, {vr(T)}
    v_and_b32 {vr(T+1)}, 3, {vr(V_LANE)}
    v_lshl_add_u32 {vr(V_WD)}, {vr(T+1)}, 4, {vr(T)}
    """)
    sXA, sXB, sWB, sXL, sWL = S_U0 + 2, S_U0 + 3, S_U0 + 4, S_U0 + 5, S_U0 + 6
    A(f"s_lshl_b32 {sr(S_T0)}, {sr(S_G)}, 3")
    A(f"s_add_u32 {sr(S_T0+1)}, {sr(S_T0)}, {sr(S_W)}")
    A(f"s_mul_i32 {sr(sXA)}, {sr(S_T0+1)}, 40960")
    A(f"s_add_u32 {sr(S_T0+1)}, {sr(S_T0)}, 7")
    A(f"s_sub_u32 {sr(S_T0+1)}, {sr(S_T0+1)}, {sr(S_W)}")
    A(f"s_mul_i32 {sr(sXB)}, {sr(S_T0+1)}, 40960")
    A(f"s_mul_i32 {sr(S_T0)}, {sr(S_R)}, 40")
    A(f"s_and_b32 {sr(S_T0)}, {sr(S_T0)}, 0xfffffff0")
    A(f"s_mul_i32 {sr(sWB)}, {sr(S_W)}, {16*3840}")
    A(f"s_add_u32 {sr(sWB)}, {sr(sWB)}, {sr(S_T0)}")
    A(f"s_lshl_b32 {sr(sXL)}, {sr(S_W)}, 13")
    A(f"s_lshl_b32 {sr(sWL)}, {sr(S_W)}, 10")

    def dma_x(c):
        st = c % 3
        for tile, sb in ((0, sXA), (1, sXB)):
            for i in range(4):
                A(f"s_add_u32 m0, {sr(sXL)}, {L_XR + st*32768 + tile*4096 + i*1024}")
                A(f"s_add_u32 {sr(S_T0)}, {sr(sb)}, {c*128 + i*8*1280}")
                A.vmem(f"buffer_load_dwordx4 {vr(V_XD0 if i % 2 == 0 else V_XD1)}, {sr(S_A,4)}, {sr(S_T0)} offen lds", f"x{c}")

    def dma_w(c):
        st = c % 4
        for seg in range(3):
            A(f"s_add_u32 m0, {sr(sWL)}, {st*WST_SZ + seg*4096}")
            A(f"s_add_u32 {sr(S_T0)}, {sr(sWB)}, {c*64*3840 + seg*1280}")
            A.vmem(f"buffer_load_dwordx4 {vr(V_WD)}, {sr(S_B,4)}, {sr(S_T0)} offen lds", f"w{c}")

    def dma_x_list(c):
        out = []
        st = c % 3
        for tile, sb in ((0, sXA), (1, sXB)):
            for i in range(4):
                out.append((f"s_add_u32 m0, {sr(sXL)}, {L_XR + st*32768 + tile*4096 + i*1024}",
                            f"s_add_u32 {sr(S_T0)}, {sr(sb)}, {c*128 + i*8*1280}",
                            f"buffer_load_dwordx4 {vr(V_XD0 if i % 2 == 0 else V_XD1)}, {sr(S_A,4)}, {sr(S_T0)} offen lds", f"x{c}"))
        return out

    def dma_w_list(c):
        out = []
        st = c % 4
        for seg in range(3):
            out.append((f"s_add_u32 m0, {sr(sWL)}, {st*WST_SZ + seg*4096}",
                        f"s_add_u32 {sr(S_T0)}, {sr(sWB)}, {c*64*3840 + seg*1280}",
                        f"buffer_load_dwordx4 {vr(V_WD)}, {sr(S_B,4)}, {sr(S_T0)} offen lds", f"w{c}"))
        return out

    dma_w(0); dma_x(0); dma_w(1); dma_x(1); dma_w(2)
    A(f"s_cmp_eq_u32 {sr(S_W)}, 3")
    A("s_cbranch_scc0 L_p0_noarr")
    n_after = len(A.vm)
    A(f"s_waitcnt vmcnt({n_after})")
    A(f"s_and_b32 {sr(S_T0)}, {sr(S_U0)}, 7")
    A(f"s_lshl_b32 {sr(S_T0)}, {sr(S_T0)}, 3")
    A(f"s_lshl_b64 {sr(S_T0+2,2)}, 1, {sr(S_T0)}")
    A(f"v_mov_b32 {vr(T)}, {sr(S_T0+2)}")
    A(f"v_mov_b32 {vr(T+1)}, {sr(S_T0+3)}")
    A(f"s_lshl_b32 {sr(S_T0)}, {sr(S_G)}, 3")
    A(f"v_mov_b32 {vr(T+2)}, {sr(S_T0)}")
    A.srd(S_C, P_DBG, 256)
    A("s_mov_b64 exec, 1")
    A(f"buffer_atomic_add_x2 {vr(T,2)}, {vr(T+2)}, {sr(S_C,4)}, 0 offen")
    A("s_mov_b64 exec, -1")
    A("L_p0_noarr:")
    A(f"""
    v_and_b32 {vr(T)}, 31, {vr(V_LANE)}
    v_lshrrev_b32 {vr(T+1)}, 5, {vr(V_LANE)}
    v_lshrrev_b32 {vr(T+2)}, 1, {vr(T)}
    v_and_b32 {vr(T+2)}, 7, {vr(T+2)}
    v_xor_b32 {vr(T+2)}, {vr(T+1)}, {vr(T+2)}
    v_lshlrev_b32 {vr(T+2)}, 4, {vr(T+2)}
    v_lshl_add_u32 {vr(T+2)}, {vr(T)}, 7, {vr(T+2)}
    v_add_u32 {vr(T+2)}, {sr(sXL)}, {vr(T+2)}
    v_add_u32 {vr(V_XRA)}, {L_XR}, {vr(T+2)}
    v_xor_b32 {vr(V_XRA+1)}, 32, {vr(V_XRA)}
    v_xor_b32 {vr(V_XRA+2)}, 64, {vr(V_XRA)}
    v_xor_b32 {vr(V_XRA+3)}, 96, {vr(V_XRA)}
    """)
    for j in range(4):
        A(f"v_add_u32 {vr(V_XRA+4+j)}, 0x10000, {vr(V_XRA+j)}")
    A(f"""
    v_and_b32 {vr(T)}, 3, {vr(V_LANE)}
    v_bfe_u32 {vr(T+1)}, {vr(V_LANE)}, 2, 2
    v_bfe_u32 {vr(T+2)}, {vr(V_LANE)}, 4, 1
    v_lshrrev_b32 {vr(T+3)}, 5, {vr(V_LANE)}
    v_lshl_add_u32 {vr(T+3)}, {vr(T+3)}, 3, {vr(T+1)}
    v_lshlrev_b32 {vr(T+3)}, 6, {vr(T+3)}
    s_and_b32 {sr(S_T0)}, {sr(S_R)}, 1
    s_lshl_b32 {sr(S_T0)}, {sr(S_T0)}, 3
    v_add_u32 {vr(T+3)}, {sr(S_T0)}, {vr(T+3)}
    v_and_b32 {vr(T+4)}, 1, {vr(T)}
    v_lshrrev_b32 {vr(T+5)}, 1, {vr(T)}
    v_lshl_add_u32 {vr(T+4)}, {vr(T+4)}, 1, {vr(T+5)}
    v_lshl_add_u32 {vr(T+5)}, {vr(T+4)}, 3, {vr(T+3)}
    v_add_u32 {vr(T+6)}, 1, {vr(T+2)}
    v_lshl_add_u32 {vr(V_WR1)}, {vr(T+6)}, 12, {vr(T+5)}
    """)
    A(f"""
    v_cmp_eq_u32 vcc, 1, {vr(T)}
    v_cndmask_b32 {vr(T+6)}, 0, 2, vcc
    v_cmp_le_u32 vcc, 2, {vr(T)}
    v_cndmask_b32 {vr(T+6)}, {vr(T+6)}, 1, vcc
    v_lshlrev_b32 {vr(T+6)}, 12, {vr(T+6)}
    v_add3_u32 {vr(T+6)}, {vr(T+6)}, {vr(T+3)}, 32
    v_cmp_eq_u32 vcc, 1, {vr(T+2)}
    v_cndmask_b32 {vr(V_WR0)}, {vr(T+5)}, {vr(T+6)}, vcc
    """)
    for j in range(4):
        A(f"v_mov_b32 {vr(V_ONES+j)}, 0x3f803f80")
    for j in range(64):
        A(f"v_mov_b32 {vr(V_ACC+j)}, 0")
    for j in range(32):
        A(f"v_mov_b32 {vr(V_CS+j)}, 0")
    A.vm_wait("xt0")
    A("s_barrier")
    A(f"""
    v_and_b32 {vr(T)}, 15, {vr(V_LANE)}
    s_lshl_b32 {sr(S_T0)}, {sr(S_W)}, 4
    v_add_u32 {vr(T)}, {sr(S_T0)}, {vr(T)}
    v_mul_u32_u24 {vr(T)}, 160, {vr(T)}
    v_lshrrev_b32 {vr(T+1)}, 4, {vr(V_LANE)}
    v_lshl_add_u32 {vr(T)}, {vr(T+1)}, 3, {vr(T)}
    v_add_u32 {vr(T)}, {XT0}, {vr(T)}
    """)
    for nt in range(5):
        A.lds(f"ds_read_b64 {vr(V_XT+2*nt,2)}, {vr(T)} offset:{32*nt}")
    A.lg_all()
    conv_channel_finish(A)
    tile_stats(A, T + 2, T + 3, T + 4)
    store_xstat(A, 0, T + 2, T + 6, "xs0", sc1=True)

    def xread(c, s, buf):
        st = c % 3
        base = V_XRA + s if st < 2 else V_XRA + 4 + s
        off = (st * 32768) & 0xffff
        A.lds(f"ds_read_b128 {vr(V_XB+8*buf,4)}, {vr(base)} offset:{off}", f"r{c}_{s}")
        A.lds(f"ds_read_b128 {vr(V_XB+8*buf+4,4)}, {vr(base)} offset:{off+4096}", f"r{c}_{s}")

    def wread(c, s):
        st = c % 4
        for mt in range(2):
            f = (4 * c + s) * 2 + mt
            for hh in range(2):
                A.lds(f"ds_read_b64_tr_b16 {wfrag_half(f, hh)}, {vr(V_WR0+mt)} offset:{st*WST_SZ + s*1024 + hh*256}", f"r{c}_{s}")

    V_AR, V_FL = T + 8, T + 10
    sKV = S_U0 + 7
    for c in range(10):
        A.vm_wait(f"x{c}")
        if c == 6:
            A.vm_wait_if("arr")
            eval_arrival(A, V_AR, T)
        if c == 8:
            A.vm_wait_if("fl")
            eval_flags(A, V_FL, 1, T)
        A("s_barrier")
        pend = []
        if c == 2:
            A(f"s_cmp_eq_u32 {sr(S_W)}, 3")
            A("s_cbranch_scc0 L_p1_nosig")
            A(f"s_lshl_b32 {sr(S_T0)}, {sr(S_G)}, 8")
            A(f"s_lshl_b32 {sr(S_T0+1)}, {sr(S_R)}, 2")
            A(f"s_add_u32 {sr(S_T0)}, {sr(S_T0)}, {sr(S_T0+1)}")
            A(f"s_add_u32 {sr(S_T0+1)}, {sr(S_T0)}, {FLAGL_SLOW}")
            A(f"v_mov_b32 {vr(T)}, 1")
            A(f"v_mov_b32 {vr(T+1)}, 0")
            A("s_mov_b64 exec, 1")
            A(f"buffer_store_dword {vr(T)}, {vr(T+1)}, {sr(S_WS,4)}, {sr(S_T0)} offen")
            A(f"buffer_store_dword {vr(T)}, {vr(T+1)}, {sr(S_WS,4)}, {sr(S_T0+1)} offen sc1")
            A("s_mov_b64 exec, -1")
            A("L_p1_nosig:")
        if c == 4:
            A.srd(S_C, P_DBG, 256)
            A(f"v_and_b32 {vr(T)}, 7, {vr(V_LANE)}")
            A(f"v_lshlrev_b32 {vr(T)}, 3, {vr(T)}")
            A.vmem(f"buffer_load_dwordx2 {vr(V_AR,2)}, {vr(T)}, {sr(S_C,4)}, 0 offen sc1", "arr")
        if c == 7:
            A(f"v_and_b32 {vr(T)}, 31, {vr(V_LANE)}")
            A(f"v_lshlrev_b32 {vr(T)}, 2, {vr(T)}")
            A.vmem(f"buffer_load_dword {vr(V_FL)}, {vr(T)}, {sr(S_WS,4)}, {sr(S_FLOFF)} offen sc1", "fl")
        if c == 8:
            issue_stats_loads(A, 0, T)
            issue_kv_tiles(A, T)
        if c + 2 < 10:
            pend += dma_x_list(c + 2)
        if c + 3 < 10:
            pend += dma_w_list(c + 3)
        wread(c, 0); xread(c, 0, 0)
        for s in range(4):
            if s < 3:
                wread(c, s + 1); xread(c, s + 1, (s + 1) & 1)
            A.lg_wait_if(f"r{c}_{s}")
            b = V_XB + 8 * (s & 1)
            ks = 4 * c + s
            k = 0
            for tile in range(2):
                for mt in range(2):
                    acc = V_ACC + 32 * tile + 16 * mt
                    A(f"v_mfma_f32_32x32x16_bf16 {vr(acc,16)}, {wfrag(2*ks+mt)}, {vr(b+4*tile,4)}, {vr(acc,16)}")
                    if pend and (k % 4 != 3 or len(pend) > 3 * (3 - s)):
                        m, so, ld, tag = pend.pop(0)
                        A(m); A(so); A.vmem(ld, tag)
                    k += 1
        while pend:
            m, so, ld, tag = pend.pop(0)
            A(m); A(so); A.vmem(ld, tag)
        lab = f"L_cs_skip{c}"
        A(f"s_cmp_eq_u32 {sr(S_W)}, {c & 3}")
        A(f"s_cbranch_scc0 {lab}")
        for s in range(4):
            for mt in range(2):
                A(f"v_mfma_f32_32x32x16_bf16 {vr(V_CS+16*mt,16)}, {wfrag(2*(4*c+s)+mt)}, {vr(V_ONES,4)}, {vr(V_CS+16*mt,16)}")
        A(f"{lab}:")
    A.vm_wait("st")
    A("s_barrier")
    issue_h_copies(A, T)
    issue_touches(A, T)
    A(f"v_lshrrev_b32 {vr(T)}, 5, {vr(V_LANE)}")
    A(f"v_lshlrev_b32 {vr(T)}, 7, {vr(T)}")
    A(f"s_lshl_b32 {sr(S_T0)}, {sr(S_W)}, 8")
    A(f"v_add_u32 {vr(T)}, {sr(S_T0)}, {vr(T)}")
    A("s_mov_b32 exec_lo, 1")
    A("s_mov_b32 exec_hi, 1")
    for j in range(8):
        A.lds(f"ds_write_b128 {vr(T)}, {vr(V_CS+4*j,4)} offset:{L_CSP + 16*j}")
    A("s_mov_b64 exec, -1")
    A.lg_all()
    A("s_barrier")
    A(f"v_lshlrev_b32 {vr(T)}, 2, {vr(V_LANE)}")
    for j in range(4):
        A.lds(f"ds_read_b32 {vr(T+1+j)}, {vr(T)} offset:{L_CSP + 256*j}")
    A.lg_all()
    A(f"v_add_f32 {vr(T+1)}, {vr(T+1)}, {vr(T+2)}")
    A(f"v_add_f32 {vr(T+3)}, {vr(T+3)}, {vr(T+4)}")
    A(f"v_add_f32 {vr(T+1)}, {vr(T+1)}, {vr(T+3)}")
    A.lds(f"ds_write_b32 {vr(T)}, {vr(T+1)} offset:{L_CS}")
    A.lg_all()


V_ST = 44
V_SHW = 186


def eval_arrival(A, var, vtmp):
    lab = A.label("Lea")
    A(f"s_mov_b32 {sr(S_T0+2)}, 0x01010101")
    A(f"v_add_u32 {vr(vtmp+3)}, {vr(var)}, {vr(var+1)}")
    A(f"v_mul_lo_u32 {vr(vtmp+3)}, {vr(vtmp+3)}, {sr(S_T0+2)}")
    A(f"v_lshrrev_b32 {vr(vtmp+3)}, 24, {vr(vtmp+3)}")
    A(f"v_cmp_eq_u32 vcc, 32, {vr(vtmp+3)}")
    A(f"s_and_b32 {sr(S_T0)}, vcc_lo, 0xff")
    A(f"s_cmp_eq_u32 {sr(S_T0)}, 0xff")
    A(f"s_cbranch_scc1 {lab}_ok")
    A(f"v_and_b32 {vr(vtmp+2)}, 7, {vr(V_LANE)}")
    A(f"v_lshlrev_b32 {vr(vtmp+2)}, 3, {vr(vtmp+2)}")
    A(f"s_mov_b32 {sr(S_SPIN)}, 0x40000")
    A(f"{lab}_spin:")
    A(f"buffer_load_dwordx2 {vr(var,2)}, {vr(vtmp+2)}, {sr(S_C,4)}, 0 offen sc1")
    A("s_waitcnt vmcnt(0)")
    A(f"v_add_u32 {vr(vtmp+3)}, {vr(var)}, {vr(var+1)}")
    A(f"v_mul_lo_u32 {vr(vtmp+3)}, {vr(vtmp+3)}, {sr(S_T0+2)}")
    A(f"v_lshrrev_b32 {vr(vtmp+3)}, 24, {vr(vtmp+3)}")
    A(f"v_cmp_eq_u32 vcc, 32, {vr(vtmp+3)}")
    A(f"s_and_b32 {sr(S_T0)}, vcc_lo, 0xff")
    A(f"s_cmp_eq_u32 {sr(S_T0)}, 0xff")
    A(f"s_cbranch_scc1 {lab}_ok")
    spin_guard(A, f"{lab}_spin")
    A(f"{lab}_ok:")
    A(f"v_readlane_b32 {sr(S_T0)}, {vr(var)}, {sr(S_G)}")
    A(f"v_readlane_b32 {sr(S_T0+1)}, {vr(var+1)}, {sr(S_G)}")
    A(f"s_bcnt1_i32_b32 {sr(S_T0)}, {sr(S_T0)}")
    A(f"s_bcnt1_i32_b32 {sr(S_T0+1)}, {sr(S_T0+1)}")
    A(f"s_add_u32 {sr(S_T0)}, {sr(S_T0)}, {sr(S_T0+1)}")
    A(f"s_cmp_eq_u32 {sr(S_T0)}, 1")
    A(f"s_cselect_b32 {sr(S_FAST)}, 1, 0")
    if FORCE_SLOW:
        A(f"s_mov_b32 {sr(S_FAST)}, 0")
    A(f"s_lshl_b32 {sr(S_T0)}, {sr(S_G)}, 8")
    A(f"s_cmp_eq_u32 {sr(S_FAST)}, 1")
    A(f"s_cselect_b32 {sr(S_FLOFF)}, {FLAGL_FAST}, {FLAGL_SLOW}")
    A(f"s_add_u32 {sr(S_FLOFF)}, {sr(S_FLOFF)}, {sr(S_T0)}")


def eval_flags(A, vfl, p, vtmp):
    lab = A.label("Lef")
    A(f"v_cmp_le_u32 vcc, {p}, {vr(vfl)}")
    A(f"s_cmp_eq_u32 vcc_lo, -1")
    A(f"s_cbranch_scc1 {lab}_ok")
    saved = list(A.vm)
    wait_local(A, p, vtmp)
    A.vm = saved
    A(f"{lab}_ok:")


def issue_stats_loads(A, stage, vtmp):
    A(f"v_and_b32 {vr(vtmp)}, 31, {vr(V_LANE)}")
    A(f"v_lshlrev_b32 {vr(vtmp)}, 6, {vr(vtmp)}")
    A(f"v_lshrrev_b32 {vr(vtmp+1)}, 5, {vr(V_LANE)}")
    A(f"v_lshl_add_u32 {vr(vtmp)}, {vr(vtmp+1)}, 5, {vr(vtmp)}")
    A(f"s_lshl_b32 {sr(S_T0)}, {sr(S_G)}, 14")
    A(f"s_add_u32 {sr(S_T0)}, {sr(S_T0)}, {XSTAT + stage*131072}")
    A(f"s_lshl_b32 {sr(S_T0+1)}, {sr(S_W)}, 11")
    A(f"s_add_u32 {sr(S_T0+2)}, {sr(S_T0)}, {sr(S_T0+1)}")
    A(f"s_add_u32 {sr(S_T0)}, {sr(S_T0)}, {7*2048}")
    A(f"s_sub_u32 {sr(S_T0+3)}, {sr(S_T0)}, {sr(S_T0+1)}")
    for tile, so in ((0, S_T0 + 2), (1, S_T0 + 3)):
        A.vmem(f"buffer_load_dwordx4 {vr(V_ST+8*tile,4)}, {vr(vtmp)}, {sr(S_WS,4)}, {sr(so)} offen sc1", "st")
        A.vmem(f"buffer_load_dwordx4 {vr(V_ST+8*tile+4,4)}, {vr(vtmp)}, {sr(S_WS,4)}, {sr(so)} offen offset:16 sc1", "st")


def issue_kv_tiles(A, T):
    A.srd(S_C, P_BK, 2621440)
    A(f"s_mul_i32 {sr(S_T0)}, {sr(S_W)}, 192")
    A(f"v_add_u32 {vr(T)}, {sr(S_T0)}, {vr(V_LANE)}")
    A(f"s_lshl_b32 {sr(S_T0+1)}, {sr(S_R)}, 6")
    A(f"s_mul_i32 {sr(S_T0+1)}, {sr(S_T0+1)}, 1280")
    A(f"s_mul_i32 {sr(S_T0+2)}, {sr(S_G)}, 160")
    A(f"s_add_u32 {sr(S_T0+1)}, {sr(S_T0+1)}, {sr(S_T0+2)}")
    A(f"s_sub_u32 {sr(S_T0+2)}, {sr(S_T0+1)}, {4*1280}")
    A(f"s_mul_i32 {sr(S_T0+3)}, {sr(S_W)}, 3072")
    for j in range(3):
        div10_offset(A, T + 2 + j, T, T + 1)
        if j < 2:
            A(f"v_add_u32 {vr(T)}, 64, {vr(T)}")
    for j in range(3):
        A(f"v_add_u32 {vr(T+5)}, {sr(S_T0+2)}, {vr(T+2+j)}")
        A(f"s_add_u32 m0, {sr(S_T0+3)}, {L_KT + j*1024}")
        A.vmem(f"buffer_load_dwordx4 {vr(T+5)}, {sr(S_C,4)}, 0 offen lds", "kv")
    A.srd(S_C, P_BV, 2621440)
    for j in range(3):
        A(f"s_add_u32 m0, {sr(S_T0+3)}, {L_VT + j*1024}")
        A.vmem(f"buffer_load_dwordx4 {vr(T+2+j)}, {sr(S_C,4)}, {sr(S_T0+1)} offen lds", "kv")
    A.srd(S_C, P_SHK, 5120)
    A(f"s_mul_i32 {sr(S_T0)}, {sr(S_G)}, 640")
    for rho in range(3):
        A(f"v_lshrrev_b32 {vr(T)}, 4, {vr(V_LANE)}")
        A(f"v_add_u32 {vr(T)}, {4*rho}, {vr(T)}")
        A(f"v_cmp_le_u32 vcc, 5, {vr(T)}")
        A(f"v_subrev_u32 {vr(T+1)}, 5, {vr(T)}")
        A(f"v_cndmask_b32 {vr(T)}, {vr(T)}, {vr(T+1)}, vcc")
        A(f"v_cmp_le_u32 vcc, 5, {vr(T)}")
        A(f"v_subrev_u32 {vr(T+1)}, 5, {vr(T)}")
        A(f"v_cndmask_b32 {vr(T)}, {vr(T)}, {vr(T+1)}, vcc")
        A(f"v_and_b32 {vr(T+1)}, 15, {vr(V_LANE)}")
        A(f"v_lshl_add_u32 {vr(T)}, {vr(T)}, 4, {vr(T+1)}")
        A(f"v_lshlrev_b32 {vr(T)}, 3, {vr(T)}")
        A.vmem(f"buffer_load_dwordx2 {vr(V_SHW+2*rho,2)}, {vr(T)}, {sr(S_C,4)}, {sr(S_T0)} offen", "kv")


S_CH, S_NCH, S_H0, S_DV, S_GCH = S_U0 + 8, S_U0 + 9, S_U0 + 10, S_U0 + 11, S_U0 + 16


def conv_channel_setup(A):
    A(f"s_cmp_lt_u32 {sr(S_R)}, 16")
    A(f"s_cselect_b32 {sr(S_NCH)}, 3, 2")
    A(f"s_mul_i32 {sr(S_T0)}, {sr(S_R)}, 3")
    A(f"s_lshl_b32 {sr(S_T0+1)}, {sr(S_R)}, 1")
    A(f"s_add_u32 {sr(S_T0+1)}, {sr(S_T0+1)}, 16")
    A(f"s_cmp_lt_u32 {sr(S_R)}, 16")
    A(f"s_cselect_b32 {sr(S_CH)}, {sr(S_T0)}, {sr(S_T0+1)}")
    A(f"s_add_u32 {sr(S_CH)}, {sr(S_CH)}, {sr(S_W)}")
    A(f"s_min_u32 {sr(S_CH)}, {sr(S_CH)}, 79")
    A(f"s_mul_i32 {sr(S_T0)}, {sr(S_G)}, 80")
    A(f"s_add_u32 {sr(S_GCH)}, {sr(S_T0)}, {sr(S_CH)}")
    A(f"s_lshl_b32 {sr(S_T0+1)}, {sr(S_GCH)}, 12")
    A(f"s_add_u32 {sr(S_T0+4)}, {sr(P_SSMK)}, {sr(S_T0+1)}")
    A(f"s_addc_u32 {sr(S_T0+5)}, {sr(P_SSMK+1)}, 0")
    A(f"s_load_dword {sr(S_H0)}, {sr(S_T0+4,2)}, 0")
    A(f"s_lshr_b32 {sr(S_T0+2)}, {sr(S_GCH)}, 1")
    A(f"s_lshl_b32 {sr(S_T0+2)}, {sr(S_T0+2)}, 2")
    A(f"s_add_u32 {sr(S_T0+6)}, {sr(P_SSMD)}, {sr(S_T0+2)}")
    A(f"s_addc_u32 {sr(S_T0+7)}, {sr(P_SSMD+1)}, 0")
    A(f"s_load_dword {sr(S_DV)}, {sr(S_T0+6,2)}, 0")


def conv_channel_finish(A):
    A(f"s_and_b32 {sr(S_T0)}, {sr(S_GCH)}, 1")
    A(f"s_cmp_eq_u32 {sr(S_T0)}, 1")
    A(f"s_cselect_b32 {sr(S_T0)}, 0, 16")
    A(f"s_lshl_b32 {sr(S_DV)}, {sr(S_DV)}, {sr(S_T0)}")
    A(f"s_and_b32 {sr(S_DV)}, {sr(S_DV)}, 0xffff0000")
    A(f"s_lshl_b32 {sr(S_H0)}, {sr(S_H0)}, 16")


def issue_h_copies(A, T):
    A(f"s_cmp_lt_u32 {sr(S_W)}, {sr(S_NCH)}")
    A("s_cbranch_scc0 L_noh")
    A(f"s_lshl_b32 {sr(S_T0+1)}, {sr(S_GCH)}, 12")
    A.srd(S_C, P_SSMK, 2621440)
    A(f"s_mul_i32 {sr(S_T0+2)}, {sr(S_W)}, {CONV_SZ}")
    A(f"v_add_u32 {vr(T)}, 2, {vr(V_L16)}")
    for j in range(4):
        A(f"s_add_u32 m0, {sr(S_T0+2)}, {L_CONV2 + 32 + j*1024}")
        A(f"s_add_u32 {sr(S_T0+3)}, {sr(S_T0+1)}, {j*1024}")
        A(f"buffer_load_dwordx4 {vr(V_L16)}, {sr(S_C,4)}, {sr(S_T0+3)} offen lds")
        A(f"s_add_u32 m0, {sr(S_T0+2)}, {L_CONV2 + 4160 + 32 + j*1024}")
        A(f"buffer_load_dwordx4 {vr(T)}, {sr(S_C,4)}, {sr(S_T0+3)} offen lds")
    A(f"v_mov_b32 {vr(T+6)}, 0")
    A(f"v_mov_b32 {vr(T+7)}, 0")
    A(f"v_lshlrev_b32 {vr(T+2)}, 2, {vr(V_LANE)}")
    A(f"v_add_u32 {vr(T+2)}, {sr(S_T0+2)}, {vr(T+2)}")
    A(f"v_lshlrev_b32 {vr(T+3)}, 3, {vr(V_LANE)}")
    A(f"v_add_u32 {vr(T+3)}, {sr(S_T0+2)}, {vr(T+3)}")
    A(f"v_add_u32 {vr(T+3)}, {L_CONV2 + 8320}, {vr(T+3)}")
    A(f"v_add_u32 {vr(T+2)}, {L_CONV2}, {vr(T+2)}")
    A(f"ds_write_b64 {vr(T+3)}, {vr(T+6,2)}")
    A(f"v_mov_b32 {vr(T+4)}, {sr(S_H0)}")
    A(f"v_cmp_eq_u32 vcc, 7, {vr(V_LANE)}")
    A(f"v_cndmask_b32 {vr(T+4)}, 0, {vr(T+4)}, vcc")
    A("s_mov_b64 exec, 0xff")
    A(f"ds_write_b32 {vr(T+2)}, {vr(T+6)}")
    A(f"ds_write_b32 {vr(T+2)}, {vr(T+4)} offset:4160")
    A("s_mov_b64 exec, -1")
    A("L_noh:")


L_CONV2 = L_CONV


def issue_touches(A, T):
    A(f"v_min_u32 {vr(T)}, 39, {vr(V_LANE)}")
    A(f"v_lshlrev_b32 {vr(T)}, 6, {vr(T)}")
    A(f"s_mul_i32 {sr(S_T0)}, {sr(S_R)}, 10240")
    A(f"s_mul_i32 {sr(S_T0+1)}, {sr(S_W)}, 2560")
    A(f"s_add_u32 {sr(S_T0)}, {sr(S_T0)}, {sr(S_T0+1)}")
    A(f"s_add_u32 {sr(S_T0)}, {sr(S_T0)}, {sr(S_GOFF)}")
    for base in (KVT, OF, XF):
        A(f"s_add_u32 {sr(S_T0+1)}, {sr(S_T0)}, {base}")
        A.vmem(f"buffer_load_dword {vr(23)}, {vr(T)}, {sr(S_WS,4)}, {sr(S_T0+1)} offen", "touch")
    A(f"v_min_u32 {vr(T)}, 7, {vr(V_LANE)}")
    A(f"v_lshlrev_b32 {vr(T)}, 6, {vr(T)}")
    A(f"s_lshl_b32 {sr(S_T0)}, {sr(S_W)}, 17")
    A(f"s_lshl_b32 {sr(S_T0+1)}, {sr(S_G)}, 14")
    A(f"s_add_u32 {sr(S_T0)}, {sr(S_T0)}, {sr(S_T0+1)}")
    A(f"s_lshl_b32 {sr(S_T0+1)}, {sr(S_R)}, 9")
    A(f"s_add_u32 {sr(S_T0)}, {sr(S_T0)}, {sr(S_T0+1)}")
    A(f"s_add_u32 {sr(S_T0)}, {sr(S_T0)}, {XSTAT}")
    A.vmem(f"buffer_load_dword {vr(23)}, {vr(T)}, {sr(S_WS,4)}, {sr(S_T0)} offen", "touch")


V_QF = 24
V_NX = 128


def p4_gemm(A):
    NX = 16
    sA, sB = S_U0 + 2, S_U0 + 3
    A(f"s_add_u32 {sr(S_T0)}, {sr(S_GOFF)}, {XF}")
    A(f"s_mul_i32 {sr(S_T0+1)}, {sr(S_W)}, 40960")
    A(f"s_add_u32 {sr(sA)}, {sr(S_T0)}, {sr(S_T0+1)}")
    A(f"s_add_u32 {sr(S_T0)}, {sr(S_T0)}, {7*40960}")
    A(f"s_sub_u32 {sr(sB)}, {sr(S_T0)}, {sr(S_T0+1)}")

    def load(n):
        ks, tile = n >> 1, n & 1
        sb = sA if tile == 0 else sB
        if ks % 4 == 0 and ks > 0:
            A(f"s_add_u32 {sr(sb)}, {sr(sb)}, 4096")
        A.vmem(f"buffer_load_dwordx4 {vr(V_NX+4*(n % NX),4)}, {vr(V_L16)}, {sr(S_WS,4)}, {sr(sb)} offen offset:{(ks % 4)*1024} sc1", f"n{n}")
    for n in range(NX):
        load(n)
    for j in range(64):
        A(f"v_mov_b32 {vr(V_ACC+j)}, 0")
    nxt = NX
    for ks in range(40):
        A.vm_wait(f"n{2*ks+1}")
        for tile in range(2):
            b = V_NX + 4 * ((2 * ks + tile) % NX)
            for mt in range(2):
                acc = V_ACC + 32 * tile + 16 * mt
                A(f"v_mfma_f32_32x32x16_bf16 {vr(acc,16)}, {wfrag(2*ks+mt)}, {vr(b,4)}, {vr(acc,16)}")
            if nxt < 80 and ks >= 1:
                load(nxt); nxt += 1
        if ks == 0:
            pass
        if ks == 20:
            issue_stats_loads(A, 2, V_T)
    assert nxt == 80, nxt
    A.vm_wait_if("st")


def qkv_epilogue(A):
    T = 40
    CS = 128
    U = 160
    A(f"v_lshrrev_b32 {vr(T)}, 5, {vr(V_LANE)}")
    A(f"v_lshlrev_b32 {vr(T)}, 7, {vr(T)}")
    for j in range(8):
        A.lds(f"ds_read_b128 {vr(CS+4*j,4)}, {vr(T)} offset:{L_CS + 16*j}")
    MM, SC, SQ, SX = 168, 170, 172, 174
    vKW, vC2 = 176, 177
    sHB, sHB2 = S_U0 + 12, S_U0 + 13
    A(f"s_lshl_b32 {sr(S_T0)}, {sr(S_LAYER)}, 3")
    A(f"s_add_u32 {sr(S_T0)}, {sr(S_T0)}, {sr(S_G)}")
    A(f"s_lshl_b32 {sr(S_T0)}, {sr(S_T0)}, 5")
    A(f"s_add_u32 {sr(S_T0)}, {sr(S_T0)}, {sr(S_R)}")
    A(f"s_mul_i32 {sr(sHB)}, {sr(S_T0)}, 24576")
    A(f"s_add_u32 {sr(sHB)}, {sr(sHB)}, {HALO}")
    A(f"s_add_u32 {sr(sHB2)}, {sr(sHB)}, 12288")
    A(f"v_cmp_le_u32 {sr(S_U0+14,2)}, 32, {vr(V_LANE)}")
    gm = sr(S_U0 + 14, 2)
    for tile in range(2):
        st = V_ST + 8 * tile
        A(f"v_add_f32 {vr(st)}, {vr(st)}, {vr(st+2)}")
        A(f"v_add_f32 {vr(st+1)}, {vr(st+1)}, {vr(st+3)}")
        A(f"v_add_f32 {vr(st+4)}, {vr(st+4)}, {vr(st+6)}")
        A(f"v_add_f32 {vr(st+5)}, {vr(st+5)}, {vr(st+7)}")
        A(f"v_add_f32 {vr(st)}, {vr(st)}, {vr(st+4)}")
        A(f"v_add_f32 {vr(st+1)}, {vr(st+1)}, {vr(st+5)}")
        for r in (st, st + 1):
            A(f"v_mov_b32 {vr(T)}, {vr(r)}")
            A(f"v_permlane32_swap_b32 {vr(T)}, {vr(r)}")
            A(f"v_add_f32 {vr(r)}, {vr(r)}, {vr(T)}")
        A(f"v_mul_f32 {vr(st)}, {f32bits(1/640):#x}, {vr(st)}")
        A(f"v_mul_f32 {vr(st+1)}, {f32bits(1/640):#x}, {vr(st+1)}")
        A(f"v_fma_f32 {vr(st+1)}, -{vr(st)}, {vr(st)}, {vr(st+1)}")
        A(f"v_max_f32 {vr(st+1)}, 0, {vr(st+1)}")
        A(f"v_add_f32 {vr(st+1)}, {f32bits(1e-5):#x}, {vr(st+1)}")
        A(f"v_rsq_f32 {vr(SC)}, {vr(st+1)}")
        A(f"v_sub_f32 {vr(MM)}, 0, {vr(st)}")
        A(f"v_mov_b32 {vr(MM+1)}, {vr(MM)}")
        A(f"v_mov_b32 {vr(SC+1)}, {vr(SC)}")
        A(f"v_mul_f32 {vr(SQ)}, {f32bits(QSCALE):#x}, {vr(SC)}")
        A(f"v_mov_b32 {vr(SQ+1)}, {vr(SQ)}")
        A(f"v_cndmask_b32 {vr(SX)}, {vr(SQ)}, {vr(SC)}, {gm}")
        A(f"v_mov_b32 {vr(SX+1)}, {vr(SX)}")
        if tile == 0:
            A.lg_all()
        A(f"v_and_b32 {vr(T)}, 31, {vr(V_LANE)}")
        if tile == 0:
            A(f"s_lshl_b32 {sr(S_T0)}, {sr(S_W)}, 5")
        else:
            A(f"s_lshl_b32 {sr(S_T0)}, {sr(S_W)}, 5")
            A(f"s_sub_u32 {sr(S_T0)}, 224, {sr(S_T0)}")
        A(f"v_add_u32 {vr(T)}, {sr(S_T0)}, {vr(T)}")
        A(f"v_mul_u32_u24 {vr(T)}, 48, {vr(T)}")
        A(f"v_lshrrev_b32 {vr(T+1)}, 5, {vr(V_LANE)}")
        A(f"v_lshl_add_u32 {vr(vKW)}, {vr(T+1)}, 4, {vr(T)}")
        A(f"v_mul_u32_u24 {vr(T+1)}, 12288, {vr(T+1)}")
        A(f"v_add3_u32 {vr(vC2)}, {vr(T)}, {vr(T+1)}, 32")

        def conv_pairs(acc, csb, npairs, scale, dst):
            for j in range(npairs):
                A(f"v_pk_fma_f32 {vr(acc+2*j,2)}, {vr(csb+2*j,2)}, {vr(MM,2)}, {vr(acc+2*j,2)}")
                A(f"v_pk_mul_f32 {vr(acc+2*j,2)}, {vr(acc+2*j,2)}, {vr(scale,2)}")
                A(f"v_cvt_pk_bf16_f32 {vr(dst+j)}, {vr(acc+2*j)}, {vr(acc+2*j+1)}")
        a0 = V_ACC + 32 * tile
        a1 = a0 + 16
        qf = V_QF + 8 * tile
        conv_pairs(a1, CS + 16, 4, SC, U)
        conv_pairs(a1 + 8, CS + 24, 4, SC, U + 4)
        A.lds(f"ds_write_b128 {vr(vKW)}, {vr(U,4)} offset:{L_KOWN}")
        A.lds(f"ds_write_b128 {vr(vKW)}, {vr(U+4,4)} offset:{L_VOWN}")
        lab = A.label("Lnohalo")
        if not DEBUG_HALO_ALL:
            A(f"s_cmp_eq_u32 {sr(S_G)}, 7")
            A(f"s_cbranch_scc1 {lab}a")
        A(f"buffer_store_dwordx4 {vr(U,4)}, {vr(vKW)}, {sr(S_WS,4)}, {sr(sHB)} offen sc1")
        A(f"buffer_store_dwordx4 {vr(U+4,4)}, {vr(vKW)}, {sr(S_WS,4)}, {sr(sHB2)} offen sc1")
        A(f"{lab}a:")
        conv_pairs(a0, CS, 4, SQ, qf)
        conv_pairs(a0 + 8, CS + 8, 2, SX, T + 2)
        conv_pairs(a0 + 12, CS + 12, 2, SC, T + 4)
        C2 = 180
        A(f"v_cndmask_b32 {vr(C2)}, {vr(T+4)}, {vr(T+2)}, {gm}")
        A(f"v_cndmask_b32 {vr(C2+1)}, {vr(T+5)}, {vr(T+3)}, {gm}")
        A(f"v_mov_b32 {vr(C2+2)}, 0x3f80")
        A(f"v_cndmask_b32 {vr(C2+2)}, 0, {vr(C2+2)}, {gm}")
        A(f"v_mov_b32 {vr(C2+3)}, 0")
        A(f"v_cndmask_b32 {vr(qf+4)}, {vr(T+2)}, 0, {gm}")
        A(f"v_cndmask_b32 {vr(qf+5)}, {vr(T+3)}, 0, {gm}")
        A(f"v_mov_b32 {vr(qf+6)}, 0")
        A(f"v_mov_b32 {vr(qf+7)}, 0")
        A.lds(f"ds_write_b128 {vr(vC2)}, {vr(C2,4)}")
        if not DEBUG_HALO_ALL:
            A(f"s_cmp_eq_u32 {sr(S_G)}, 7")
            A(f"s_cbranch_scc1 {lab}b")
        A(f"buffer_store_dwordx4 {vr(C2,4)}, {vr(vC2)}, {sr(S_WS,4)}, {sr(sHB)} offen sc1")
        A(f"{lab}b:")
    A.lg_all()
    A("s_barrier")
    A.vm = ["unknown"] * 8


DEBUG_HALO_ALL = False
```

```python
from mk_base import *
import mk_p1
from mk_p1 import (V_QF, V_SHW, S_CH, S_NCH, S_H0, S_DV, S_GCH, f32bits, signal_local_store, wait_local, spin_guard)

V_OA, V_OB = 64, 80
V_S0, V_S1 = 96, 112
V_PP = 128
V_KF = 136
V_VF0, V_VF1 = 144, 152
V_CM = 160
V_K0, V_K1, V_VV = 40, 41, 42
V_B0, V_B1, V_B2 = 43, 44, 45
TT = 46
S_N = S_U0 + 18
NEG = 0xf149f2ca


def att_lane_setup(A):
    A(f"""
    v_and_b32 {vr(TT)}, 31, {vr(V_LANE)}
    v_mul_u32_u24 {vr(TT)}, 48, {vr(TT)}
    v_lshrrev_b32 {vr(TT+1)}, 5, {vr(V_LANE)}
    v_lshl_add_u32 {vr(V_B0)}, {vr(TT+1)}, 4, {vr(TT)}
    v_add_u32 {vr(V_B1)}, 32, {vr(TT)}
    v_bfe_u32 {vr(TT)}, {vr(V_LANE)}, 2, 2
    v_lshl_add_u32 {vr(TT)}, {vr(TT+1)}, 2, {vr(TT)}
    v_mul_u32_u24 {vr(TT)}, 48, {vr(TT)}
    v_bfe_u32 {vr(TT+1)}, {vr(V_LANE)}, 4, 1
    v_lshl_add_u32 {vr(TT)}, {vr(TT+1)}, 5, {vr(TT)}
    v_and_b32 {vr(TT+1)}, 3, {vr(V_LANE)}
    v_lshl_add_u32 {vr(TT)}, {vr(TT+1)}, 3, {vr(TT)}
    v_add_u32 {vr(V_B2)}, 12288, {vr(TT)}
    """)


def build_mask(A, own):
    A(f"v_and_b32 {vr(TT)}, 31, {vr(V_LANE)}")
    A(f"v_lshrrev_b32 {vr(TT+1)}, 5, {vr(V_LANE)}")
    A(f"v_lshlrev_b32 {vr(TT+1)}, 2, {vr(TT+1)}")
    A(f"v_sub_u32 {vr(TT)}, {vr(TT)}, {vr(TT+1)}")
    A(f"v_mov_b32 {vr(TT+1)}, {NEG:#x}")
    for i in range(4):
        for r in range(4):
            A(f"v_cmp_le_i32 vcc, {8*i+r}, {vr(TT)}")
            if own:
                A(f"v_cndmask_b32 {vr(V_CM+4*i+r)}, {vr(TT+1)}, 0, vcc")
            else:
                A(f"v_cndmask_b32 {vr(V_CM+4*i+r)}, 0, {vr(TT+1)}, vcc")


def att_reads(A, vf):
    A(f"ds_read_b128 {vr(V_KF,4)}, {vr(V_K0)}")
    A(f"ds_read_b128 {vr(V_KF+4,4)}, {vr(V_K1)}")
    for j in range(4):
        A(f"ds_read_b64_tr_b16 {vr(vf+2*j,2)}, {vr(V_VV)} offset:{384*j}")


def att_run(A, qf, oacc, own, s_tile, base):
    lab = A.label("Latt")
    if own:
        A(f"s_add_u32 {sr(S_N)}, {sr(s_tile)}, 1")
        A(f"v_add_u32 {vr(V_K0)}, {base}, {vr(V_B0)}")
        A(f"v_add_u32 {vr(V_K1)}, {base}, {vr(V_B1)}")
        A(f"v_add_u32 {vr(V_VV)}, {base}, {vr(V_B2)}")
    else:
        A(f"s_sub_u32 {sr(S_N)}, 8, {sr(s_tile)}")
        A(f"s_mul_i32 {sr(S_T0)}, {sr(s_tile)}, 1536")
        A(f"s_add_u32 {sr(S_T0)}, {sr(S_T0)}, {base}")
        A(f"v_add_u32 {vr(V_K0)}, {sr(S_T0)}, {vr(V_B0)}")
        A(f"v_add_u32 {vr(V_K1)}, {sr(S_T0)}, {vr(V_B1)}")
        A(f"v_add_u32 {vr(V_VV)}, {sr(S_T0)}, {vr(V_B2)}")
    att_reads(A, V_VF0)
    A("s_waitcnt lgkmcnt(4)")

    def qk(sdst, masked):
        c = vr(V_CM, 16) if masked else "0"
        A(f"v_mfma_f32_32x32x16_bf16 {vr(sdst,16)}, {vr(V_KF,4)}, {vr(qf,4)}, {c}")

    def qk2(sdst):
        A(f"v_mfma_f32_32x32x16_bf16 {vr(sdst,16)}, {vr(V_KF+4,4)}, {vr(qf+4,4)}, {vr(sdst,16)}")

    if own:
        A(f"s_cmp_eq_u32 {sr(S_N)}, 1")
        A(f"s_cbranch_scc1 {lab}_m0")
        qk(V_S0, False)
        A(f"s_branch {lab}_m1")
        A(f"{lab}_m0:")
        qk(V_S0, True)
        A(f"{lab}_m1:")
    else:
        qk(V_S0, True)
    qk2(V_S0)

    def body(tag, cur, nxt, vcur, vnxt, nexttag):
        A(f"{lab}_{tag}:")
        A(f"s_sub_u32 {sr(S_N)}, {sr(S_N)}, 1")
        A(f"s_cmp_eq_u32 {sr(S_N)}, 0")
        A(f"s_cbranch_scc1 {lab}_{tag}_last")
        A(f"v_add_u32 {vr(V_K0)}, 1536, {vr(V_K0)}")
        A(f"v_add_u32 {vr(V_K1)}, 1536, {vr(V_K1)}")
        A(f"v_add_u32 {vr(V_VV)}, 1536, {vr(V_VV)}")
        att_reads(A, vnxt)
        for j in range(8):
            A(f"v_exp_f32 {vr(cur+j)}, {vr(cur+j)}")
        A("s_waitcnt lgkmcnt(4)")
        if own:
            A(f"s_cmp_eq_u32 {sr(S_N)}, 1")
            A(f"s_cbranch_scc1 {lab}_{tag}_m0")
            qk(nxt, False)
            A(f"s_branch {lab}_{tag}_m1")
            A(f"{lab}_{tag}_m0:")
            qk(nxt, True)
            A(f"{lab}_{tag}_m1:")
        else:
            qk(nxt, False)
        for j in range(4):
            A(f"v_cvt_pk_bf16_f32 {vr(V_PP+j)}, {vr(cur+2*j)}, {vr(cur+2*j+1)}")
        qk2(nxt)
        for j in range(8, 16):
            A(f"v_exp_f32 {vr(cur+j)}, {vr(cur+j)}")
        A(f"v_mfma_f32_32x32x16_bf16 {vr(oacc,16)}, {vr(vcur,4)}, {vr(V_PP,4)}, {vr(oacc,16)}")
        for j in range(4, 8):
            A(f"v_cvt_pk_bf16_f32 {vr(V_PP+j)}, {vr(cur+2*j)}, {vr(cur+2*j+1)}")
        A(f"v_mfma_f32_32x32x16_bf16 {vr(oacc,16)}, {vr(vcur+4,4)}, {vr(V_PP+4,4)}, {vr(oacc,16)}")
        if nexttag:
            A(f"s_branch {lab}_{nexttag}")
        return

    def last(tag, cur, vcur):
        A(f"{lab}_{tag}_last:")
        for j in range(16):
            A(f"v_exp_f32 {vr(cur+j)}, {vr(cur+j)}")
        for j in range(8):
            A(f"v_cvt_pk_bf16_f32 {vr(V_PP+j)}, {vr(cur+2*j)}, {vr(cur+2*j+1)}")
        A("s_waitcnt lgkmcnt(0)")
        A(f"v_mfma_f32_32x32x16_bf16 {vr(oacc,16)}, {vr(vcur,4)}, {vr(V_PP,4)}, {vr(oacc,16)}")
        A(f"v_mfma_f32_32x32x16_bf16 {vr(oacc,16)}, {vr(vcur+4,4)}, {vr(V_PP+4,4)}, {vr(oacc,16)}")

    body("e", V_S0, V_S1, V_VF0, V_VF1, None)
    body("o", V_S1, V_S0, V_VF1, V_VF0, "e")
    last("e", V_S0, V_VF0)
    A(f"s_branch {lab}_done")
    last("o", V_S1, V_VF1)
    A(f"{lab}_done:")


S_TA, S_TB = S_U0 + 19, S_U0 + 20


def halo_signal(A):
    A("s_waitcnt vmcnt(0)")
    A(f"s_lshl_b32 {sr(S_T0)}, {sr(S_LAYER)}, 3")
    A(f"s_add_u32 {sr(S_T0)}, {sr(S_T0)}, {sr(S_G)}")
    A(f"s_lshl_b32 {sr(S_T0)}, {sr(S_T0)}, 5")
    A(f"s_add_u32 {sr(S_T0)}, {sr(S_T0)}, {sr(S_R)}")
    A(f"s_lshl_b32 {sr(S_T0)}, {sr(S_T0)}, 7")
    A(f"s_lshl_b32 {sr(S_T0+1)}, {sr(S_W)}, 2")
    A(f"s_add_u32 {sr(S_T0)}, {sr(S_T0)}, {sr(S_T0+1)}")
    A(f"s_add_u32 {sr(S_T0)}, {sr(S_T0)}, {FLAGH}")
    A(f"v_mov_b32 {vr(TT)}, 1")
    A(f"v_mov_b32 {vr(TT+1)}, 0")
    A("s_mov_b64 exec, 1")
    A(f"buffer_store_dword {vr(TT)}, {vr(TT+1)}, {sr(S_WS,4)}, {sr(S_T0)} offen sc1")
    A("s_mov_b64 exec, -1")


def attention_own(A):
    att_lane_setup(A)
    build_mask(A, True)
    for j in range(32):
        A(f"v_mov_b32 {vr(V_OA+j)}, 0")
    A(f"s_mov_b32 {sr(S_TA)}, {sr(S_W)}")
    A(f"s_sub_u32 {sr(S_TB)}, 7, {sr(S_W)}")
    att_run(A, V_QF + 8, V_OB, True, S_TB, L_KOWN)
    halo_signal(A)
    att_run(A, V_QF, V_OA, True, S_TA, L_KOWN)


def halo_fetch(A, nper, first):
    lab = A.label("Lhf")
    A(f"s_lshl_b32 {sr(S_T0)}, {sr(S_LAYER)}, 3")
    A(f"s_add_u32 {sr(S_T0)}, {sr(S_T0)}, {sr(S_G)}")
    A(f"s_sub_u32 {sr(S_T0)}, {sr(S_T0)}, 1")
    A(f"s_lshl_b32 {sr(S_T0)}, {sr(S_T0)}, 5")
    A(f"s_add_u32 {sr(S_T0)}, {sr(S_T0)}, {sr(S_R)}")
    A(f"s_mul_i32 {sr(S_T0+2)}, {sr(S_T0)}, 24576")
    A(f"s_add_u32 {sr(S_T0+2)}, {sr(S_T0+2)}, {HALO}")
    A(f"s_lshl_b32 {sr(S_T0)}, {sr(S_T0)}, 7")
    A(f"s_add_u32 {sr(S_T0)}, {sr(S_T0)}, {FLAGH}")
    A(f"v_and_b32 {vr(TT+1)}, 3, {vr(V_LANE)}")
    A(f"v_lshlrev_b32 {vr(TT+1)}, 2, {vr(TT+1)}")
    A(f"s_mov_b32 {sr(S_SPIN)}, 0x40000")
    A(f"{lab}:")
    A(f"buffer_load_dword {vr(TT)}, {vr(TT+1)}, {sr(S_WS,4)}, {sr(S_T0)} offen sc1")
    A("s_waitcnt vmcnt(0)")
    A(f"v_cmp_eq_u32 vcc, 1, {vr(TT)}")
    A(f"s_cmp_eq_u32 vcc_lo, -1")
    A(f"s_cbranch_scc1 {lab}_ok")
    spin_guard(A, lab)
    A(f"{lab}_ok:")
    if first is None:
        A(f"s_mul_i32 {sr(S_T0+1)}, {sr(S_W)}, {nper*1024}")
    else:
        A(f"s_mov_b32 {sr(S_T0+1)}, {first*1024}")
    A(f"s_add_u32 {sr(S_T0+2)}, {sr(S_T0+2)}, {sr(S_T0+1)}")
    for j in range(nper):
        A(f"s_add_u32 m0, {sr(S_T0+1)}, {L_KHALO + j*1024}")
        A(f"s_add_u32 {sr(S_T0+3)}, {sr(S_T0+2)}, {j*1024}")
        A(f"buffer_load_dwordx4 {vr(V_L16)}, {sr(S_WS,4)}, {sr(S_T0+3)} offen sc1 lds")


def attention_halo(A):
    att_lane_setup(A)
    build_mask(A, False)
    att_run(A, V_QF + 8, V_OB, False, S_TB, L_KHALO)
    att_run(A, V_QF, V_OA, False, S_TA, L_KHALO)


def attention_finish(A):
    T = TT
    vO = 60
    A(f"v_and_b32 {vr(T)}, 31, {vr(V_LANE)}")
    A(f"v_lshrrev_b32 {vr(T+1)}, 4, {vr(T)}")
    A(f"v_mul_u32_u24 {vr(T+1)}, 20480, {vr(T+1)}")
    A(f"v_and_b32 {vr(T)}, 15, {vr(T)}")
    A(f"v_lshl_add_u32 {vr(T)}, {vr(T)}, 4, {vr(T+1)}")
    A(f"s_mul_i32 {sr(S_T0)}, {sr(S_R)}, 5")
    A(f"v_lshrrev_b32 {vr(T+1)}, 5, {vr(V_LANE)}")
    A(f"v_add_u32 {vr(T+1)}, {sr(S_T0)}, {vr(T+1)}")
    for j in range(3):
        A(f"v_add_u32 {vr(T+2)}, {2*j}, {vr(T+1)}")
        A(f"v_lshrrev_b32 {vr(T+3)}, 3, {vr(T+2)}")
        A(f"v_lshl_add_u32 {vr(T+3)}, {vr(T+3)}, 10, {vr(T)}")
        A(f"v_bfe_u32 {vr(T+4)}, {vr(T+2)}, 2, 1")
        A(f"v_lshl_add_u32 {vr(T+3)}, {vr(T+4)}, 9, {vr(T+3)}")
        A(f"v_and_b32 {vr(T+4)}, 1, {vr(T+2)}")
        A(f"v_lshl_add_u32 {vr(T+3)}, {vr(T+4)}, 8, {vr(T+3)}")
        A(f"v_bfe_u32 {vr(T+4)}, {vr(T+2)}, 1, 1")
        A(f"v_lshl_add_u32 {vr(vO+j)}, {vr(T+4)}, 3, {vr(T+3)}")
    for tile, oacc, st in ((1, V_OB, S_TB), (0, V_OA, S_TA)):
        lab = A.label("Lfin")
        A(f"v_mov_b32 {vr(T)}, {vr(oacc+8)}")
        A(f"v_mov_b32 {vr(T+1)}, {vr(oacc+8)}")
        A(f"v_permlane32_swap_b32 {vr(T)}, {vr(T+1)}")
        A(f"v_cmp_lt_f32 vcc, {f32bits(2.0**-64):#x}, {vr(T+1)}")
        A(f"s_mov_b64 {sr(S_T0+4,2)}, vcc")
        A(f"v_cmp_gt_f32 vcc, {f32bits(2.0**64):#x}, {vr(T+1)}")
        A(f"s_and_b64 {sr(S_T0+4,2)}, {sr(S_T0+4,2)}, vcc")
        A(f"s_cmp_eq_u64 {sr(S_T0+4,2)}, -1")
        A(f"s_cbranch_scc1 {lab}_ok")
        fallback_call(A, tile)
        A(f"v_mov_b32 {vr(T)}, {vr(oacc+8)}")
        A(f"v_mov_b32 {vr(T+1)}, {vr(oacc+8)}")
        A(f"v_permlane32_swap_b32 {vr(T)}, {vr(T+1)}")
        A(f"{lab}_ok:")
        A(f"v_rcp_f32 {vr(T+2)}, {vr(T+1)}")
        for j in range(12):
            A(f"v_mul_f32 {vr(oacc+j)}, {vr(oacc+j)}, {vr(T+2)}")
        for j in range(6):
            A(f"v_cvt_pk_bf16_f32 {vr(100+j)}, {vr(oacc+2*j)}, {vr(oacc+2*j+1)}")
        A(f"s_mul_i32 {sr(S_T0)}, {sr(st)}, 40960")
        A(f"s_add_u32 {sr(S_T0)}, {sr(S_T0)}, {sr(S_GOFF)}")
        A(f"s_add_u32 {sr(S_T0)}, {sr(S_T0)}, {OF}")
        A(f"buffer_store_dwordx2 {vr(100,2)}, {vr(vO)}, {sr(S_WS,4)}, {sr(S_T0)} offen")
        A(f"buffer_store_dwordx2 {vr(102,2)}, {vr(vO+1)}, {sr(S_WS,4)}, {sr(S_T0)} offen")
        A("s_mov_b32 exec_hi, 0")
        A(f"buffer_store_dwordx2 {vr(104,2)}, {vr(vO+2)}, {sr(S_WS,4)}, {sr(S_T0)} offen")
        A("s_mov_b32 exec_hi, -1")


S_FBT, S_FBRET = S_U0 + 21, S_U0 + 22
FB_Q, FB_O = 104, 112


def fallback_call(A, tile):
    qf = V_QF + 8 * tile
    oacc = V_OA if tile == 0 else V_OB
    for j in range(8):
        A(f"v_mov_b32 {vr(FB_Q+j)}, {vr(qf+j)}")
    A(f"s_mov_b32 {sr(S_FBT)}, {sr(S_TA if tile == 0 else S_TB)}")
    ret = A.label("Lfbret")
    A(f"s_getpc_b64 {sr(S_FBRET,2)}")
    A(f"{ret}_pc:")
    A(f"s_add_u32 {sr(S_FBRET)}, {sr(S_FBRET)}, {ret}-{ret}_pc")
    A(f"s_addc_u32 {sr(S_FBRET+1)}, {sr(S_FBRET+1)}, 0")
    A("s_branch L_fallback")
    A(f"{ret}:")
    for j in range(16):
        A(f"v_mov_b32 {vr(oacc+j)}, {vr(FB_O+j)}")


def fallback_code(A):
    M = 128
    CB = 160
    SS = 144
    T = TT
    A("L_fallback:")
    att_lane_setup(A)

    def addr_for(n_s):
        A(f"s_sub_i32 {sr(S_T0)}, {sr(S_FBT)}, {sr(n_s)}")
        A(f"s_cmp_lt_i32 {sr(S_T0)}, 0")
        A(f"s_cselect_b32 {sr(S_T0+1)}, {L_KHALO + 8*1536}, {L_KOWN}")
        A(f"s_mul_i32 {sr(S_T0)}, {sr(S_T0)}, 1536")
        A(f"s_add_u32 {sr(S_T0)}, {sr(S_T0)}, {sr(S_T0+1)}")
        A(f"v_add_u32 {vr(V_K0)}, {sr(S_T0)}, {vr(V_B0)}")
        A(f"v_add_u32 {vr(V_K1)}, {sr(S_T0)}, {vr(V_B1)}")
        A(f"v_add_u32 {vr(V_VV)}, {sr(S_T0)}, {vr(V_B2)}")

    def bias(n_s, lab, with_max):
        A(f"v_and_b32 {vr(T)}, 31, {vr(V_LANE)}")
        A(f"v_lshrrev_b32 {vr(T+1)}, 5, {vr(V_LANE)}")
        A(f"v_lshlrev_b32 {vr(T+1)}, 2, {vr(T+1)}")
        A(f"v_sub_u32 {vr(T)}, {vr(T)}, {vr(T+1)}")
        A(f"v_mov_b32 {vr(T+1)}, {NEG:#x}")
        if with_max:
            A(f"v_sub_f32 {vr(T+2)}, 0, {vr(M)}")
        else:
            A(f"v_mov_b32 {vr(T+2)}, 0")
        A(f"s_cmp_eq_u32 {sr(n_s)}, 0")
        A(f"s_cbranch_scc1 {lab}_own")
        A(f"s_cmp_eq_u32 {sr(n_s)}, 8")
        A(f"s_cbranch_scc1 {lab}_halo")
        for j in range(16):
            A(f"v_mov_b32 {vr(CB+j)}, {vr(T+2)}")
        A(f"s_branch {lab}_done")
        A(f"{lab}_own:")
        for i in range(4):
            for r in range(4):
                A(f"v_cmp_le_i32 vcc, {8*i+r}, {vr(T)}")
                A(f"v_cndmask_b32 {vr(CB+4*i+r)}, {vr(T+1)}, {vr(T+2)}, vcc")
        A(f"s_branch {lab}_done")
        A(f"{lab}_halo:")
        for i in range(4):
            for r in range(4):
                A(f"v_cmp_le_i32 vcc, {8*i+r}, {vr(T)}")
                A(f"v_cndmask_b32 {vr(CB+4*i+r)}, {vr(T+2)}, {vr(T+1)}, vcc")
        A(f"{lab}_done:")

    sN, sEnd = S_U0 + 24, S_U0 + 25
    A(f"s_add_u32 {sr(sEnd)}, {sr(S_FBT)}, 1")
    A(f"s_cmp_eq_u32 {sr(S_G)}, 0")
    A(f"s_cselect_b32 {sr(sEnd)}, {sr(sEnd)}, 9")
    A(f"v_mov_b32 {vr(M)}, {NEG:#x}")
    A(f"s_mov_b32 {sr(sN)}, 0")
    A("L_fb_p1:")
    addr_for(sN)
    bias(sN, "L_fb_b1", False)
    A(f"ds_read_b128 {vr(V_KF,4)}, {vr(V_K0)}")
    A(f"ds_read_b128 {vr(V_KF+4,4)}, {vr(V_K1)}")
    A("s_waitcnt lgkmcnt(0)")
    A(f"v_mfma_f32_32x32x16_bf16 {vr(SS,16)}, {vr(V_KF,4)}, {vr(FB_Q,4)}, {vr(CB,16)}")
    A(f"v_mfma_f32_32x32x16_bf16 {vr(SS,16)}, {vr(V_KF+4,4)}, {vr(FB_Q+4,4)}, {vr(SS,16)}")
    for j in range(8):
        A(f"v_max3_f32 {vr(M)}, {vr(M)}, {vr(SS+2*j)}, {vr(SS+2*j+1)}")
    A(f"s_add_u32 {sr(sN)}, {sr(sN)}, 1")
    A(f"s_cmp_lt_u32 {sr(sN)}, {sr(sEnd)}")
    A("s_cbranch_scc1 L_fb_p1")
    A(f"v_mov_b32 {vr(T)}, {vr(M)}")
    A(f"v_permlane32_swap_b32 {vr(T)}, {vr(M)}")
    A(f"v_max_f32 {vr(M)}, {vr(M)}, {vr(T)}")
    for j in range(16):
        A(f"v_mov_b32 {vr(FB_O+j)}, 0")
    A(f"s_mov_b32 {sr(sN)}, 0")
    A("L_fb_p2:")
    addr_for(sN)
    bias(sN, "L_fb_b2", True)
    A(f"ds_read_b128 {vr(V_KF,4)}, {vr(V_K0)}")
    A(f"ds_read_b128 {vr(V_KF+4,4)}, {vr(V_K1)}")
    for j in range(4):
        A(f"ds_read_b64_tr_b16 {vr(96+2*j,2)}, {vr(V_VV)} offset:{384*j}")
    A("s_waitcnt lgkmcnt(0)")
    A(f"v_mfma_f32_32x32x16_bf16 {vr(SS,16)}, {vr(V_KF,4)}, {vr(FB_Q,4)}, {vr(CB,16)}")
    A(f"v_mfma_f32_32x32x16_bf16 {vr(SS,16)}, {vr(V_KF+4,4)}, {vr(FB_Q+4,4)}, {vr(SS,16)}")
    for j in range(16):
        A(f"v_exp_f32 {vr(SS+j)}, {vr(SS+j)}")
    for j in range(8):
        A(f"v_cvt_pk_bf16_f32 {vr(132+j)}, {vr(SS+2*j)}, {vr(SS+2*j+1)}")
    A(f"v_mfma_f32_32x32x16_bf16 {vr(FB_O,16)}, {vr(96,4)}, {vr(132,4)}, {vr(FB_O,16)}")
    A(f"v_mfma_f32_32x32x16_bf16 {vr(FB_O,16)}, {vr(100,4)}, {vr(136,4)}, {vr(FB_O,16)}")
    A(f"s_add_u32 {sr(sN)}, {sr(sN)}, 1")
    A(f"s_cmp_lt_u32 {sr(sN)}, {sr(sEnd)}")
    A("s_cbranch_scc1 L_fb_p2")
    A("s_nop 15")
    A(f"s_setpc_b64 {sr(S_FBRET,2)}")


def kv_prepare(A):
    T = TT
    KK, VV, WW, OUT = 96, 108, 116, 120
    RK, RV = 128, 134
    for rho in range(3):
        A(f"v_lshrrev_b32 {vr(T)}, 4, {vr(V_LANE)}")
        A(f"v_add_u32 {vr(T)}, {4*rho}, {vr(T)}")
        A(f"v_mul_u32_u24 {vr(T+1)}, 13, {vr(T)}")
        A(f"v_lshrrev_b32 {vr(T+1)}, 6, {vr(T+1)}")
        A(f"v_mul_u32_u24 {vr(T+2)}, 5, {vr(T+1)}")
        A(f"v_sub_u32 {vr(T+2)}, {vr(T)}, {vr(T+2)}")
        A(f"v_min_u32 {vr(T+1)}, 1, {vr(T+1)}")
        A(f"s_lshl_b32 {sr(S_T0)}, {sr(S_W)}, 1")
        A(f"v_add_u32 {vr(T+1)}, {sr(S_T0)}, {vr(T+1)}")
        A(f"v_bfe_u32 {vr(T+3)}, {vr(V_LANE)}, 2, 2")
        A(f"v_lshl_add_u32 {vr(T+3)}, {vr(T+1)}, 3, {vr(T+3)}")
        A(f"v_mul_u32_u24 {vr(T+3)}, 160, {vr(T+3)}")
        A(f"v_lshl_add_u32 {vr(T+3)}, {vr(T+2)}, 5, {vr(T+3)}")
        A(f"v_and_b32 {vr(T+4)}, 3, {vr(V_LANE)}")
        A(f"v_lshl_add_u32 {vr(T+3)}, {vr(T+4)}, 3, {vr(T+3)}")
        for j in range(3):
            A(f"ds_read_b64_tr_b16 {vr(RK+2*j,2)}, {vr(T+3)} offset:{L_KT + 640*j}")
        for j in range(2):
            A(f"ds_read_b64_tr_b16 {vr(RV+2*j,2)}, {vr(T+3)} offset:{L_VT + 640*j}")
        A(f"v_and_b32 {vr(T+4)}, 15, {vr(V_LANE)}")
        A(f"v_lshl_add_u32 {vr(T+4)}, {vr(T+2)}, 4, {vr(T+4)}")
        A(f"v_lshlrev_b32 {vr(T+4)}, 12, {vr(T+4)}")
        A(f"v_lshl_add_u32 {vr(T+4)}, {vr(T+1)}, 4, {vr(T+4)}")
        w = V_SHW + 2 * rho
        A(f"v_lshlrev_b32 {vr(WW)}, 16, {vr(w)}")
        A(f"v_and_b32 {vr(WW+1)}, 0xffff0000, {vr(w)}")
        A(f"v_lshlrev_b32 {vr(WW+2)}, 16, {vr(w+1)}")
        A(f"v_and_b32 {vr(WW+3)}, 0xffff0000, {vr(w+1)}")
        A("s_waitcnt lgkmcnt(0)")
        for j in range(6):
            A(f"v_lshlrev_b32 {vr(KK+2*j)}, 16, {vr(RK+j)}")
            A(f"v_and_b32 {vr(KK+2*j+1)}, 0xffff0000, {vr(RK+j)}")
        for j in range(4):
            A(f"v_lshlrev_b32 {vr(VV+2*j)}, 16, {vr(RV+j)}")
            A(f"v_and_b32 {vr(VV+2*j+1)}, 0xffff0000, {vr(RV+j)}")
        for j in range(8):
            A(f"v_mul_f32 {vr(OUT+j)}, {vr(WW+3)}, {vr(KK+j+1)}")
            A(f"v_fmac_f32 {vr(OUT+j)}, {vr(WW+2)}, {vr(KK+j+2)}")
            A(f"v_fmac_f32 {vr(OUT+j)}, {vr(WW+1)}, {vr(KK+j+3)}")
            A(f"v_fmac_f32 {vr(OUT+j)}, {vr(WW)}, {vr(KK+j+4)}")
            A(f"v_mul_f32 {vr(OUT+j)}, {vr(OUT+j)}, {vr(VV+j)}")
        for j in range(4):
            A(f"v_cvt_pk_bf16_f32 {vr(RK+j)}, {vr(OUT+7-2*j)}, {vr(OUT+6-2*j)}")
        A(f"s_lshl_b32 {sr(S_T0)}, {sr(S_R)}, 7")
        A(f"s_add_u32 {sr(S_T0)}, {sr(S_T0)}, {sr(S_GOFF)}")
        A(f"s_add_u32 {sr(S_T0)}, {sr(S_T0)}, {KVT}")
        if rho == 2:
            A("s_mov_b32 exec_hi, 0")
        A(f"buffer_store_dwordx4 {vr(RK,4)}, {vr(T+4)}, {sr(S_WS,4)}, {sr(S_T0)} offen")
        if rho == 2:
            A("s_mov_b32 exec_hi, -1")


def conv_run(A):
    ACC, AR, BB = 96, 128, 144
    vA, vAt, vB, vU = 40, 41, 42, 43
    T = TT
    sCB = S_U0 + 26
    A(f"s_mul_i32 {sr(sCB)}, {sr(S_W)}, {CONV_SZ}")
    A(f"s_add_u32 {sr(sCB)}, {sr(sCB)}, {L_CONV}")
    A(f"s_lshl_b32 {sr(S_T0)}, {sr(S_CH)}, 12")
    A(f"s_add_u32 {sr(S_T0)}, {sr(S_T0)}, {sr(S_GOFF)}")
    A(f"s_add_u32 {sr(S_T0)}, {sr(S_T0)}, {KVT}")
    for j in range(4):
        A(f"s_add_u32 m0, {sr(sCB)}, {8320 + 512 + j*1024}")
        A(f"s_add_u32 {sr(S_T0+1)}, {sr(S_T0)}, {j*1024}")
        A(f"buffer_load_dwordx4 {vr(V_L16)}, {sr(S_WS,4)}, {sr(S_T0+1)} offen sc1 lds")
    A(f"""
    v_and_b32 {vr(T)}, 15, {vr(V_LANE)}
    v_lshrrev_b32 {vr(T+1)}, 4, {vr(V_LANE)}
    v_lshlrev_b32 {vr(T+2)}, 3, {vr(T+1)}
    v_sub_u32 {vr(T+2)}, {vr(T)}, {vr(T+2)}
    v_add_u32 {vr(T+2)}, 9, {vr(T+2)}
    v_ashrrev_i32 {vr(T+2)}, 1, {vr(T+2)}
    v_lshlrev_b32 {vr(T+2)}, 2, {vr(T+2)}
    v_and_b32 {vr(T+3)}, 1, {vr(T)}
    v_xor_b32 {vr(T+3)}, 1, {vr(T+3)}
    v_mul_u32_u24 {vr(T+3)}, 4160, {vr(T+3)}
    v_add3_u32 {vr(vA)}, {vr(T+2)}, {vr(T+3)}, 32
    v_add_u32 {vr(vA)}, {sr(sCB)}, {vr(vA)}
    v_lshlrev_b32 {vr(T+2)}, 5, {vr(T)}
    v_lshl_add_u32 {vr(T+2)}, {vr(T+1)}, 4, {vr(T+2)}
    v_add_u32 {vr(T+2)}, {8320 + 512 - 32}, {vr(T+2)}
    v_add_u32 {vr(vB)}, {sr(sCB)}, {vr(T+2)}
    """)
    for j in range(32):
        A(f"v_mov_b32 {vr(ACC+j)}, 0")
    A("s_waitcnt vmcnt(0) lgkmcnt(0)")
    G_ = A
    G_.lg = []

    def rdA(n):
        a = n % 8
        slot = n % 4
        if a == 0:
            A.lds(f"ds_read2_b32 {vr(AR+4*slot,2)}, {vr(vA)} offset0:0 offset1:1", f"A{n}")
            A.lds(f"ds_read2_b32 {vr(AR+4*slot+2,2)}, {vr(vA)} offset0:2 offset1:3", f"A{n}")
        else:
            A(f"v_add_u32 {vr(vAt)}, {512*a}, {vr(vA)}")
            A.lds(f"ds_read2_b32 {vr(AR+4*slot,2)}, {vr(vAt)} offset0:0 offset1:1", f"A{n}")
            A.lds(f"ds_read2_b32 {vr(AR+4*slot+2,2)}, {vr(vAt)} offset0:2 offset1:3", f"A{n}")
        if a == 7:
            A(f"v_add_u32 {vr(vA)}, 64, {vr(vA)}")

    def rdB(e, gen):
        A.lds(f"ds_read_b128 {vr(BB+4*e,4)}, {vr(vB)} offset:{512*e}", f"B{gen}_{e}")

    for e in range(8):
        rdB(e, 0)
    A(f"v_subrev_u32 {vr(vB)}, 64, {vr(vB)}")
    for n in range(3):
        rdA(n)
    for d2 in range(8):
        for a in range(8):
            n = 8 * d2 + a
            if n + 3 < 64:
                rdA(n + 3)
            A.lg_wait_if(f"A{n}")
            for nt in range(7, a - 1, -1):
                e = nt - a
                A.lg_wait_if(f"B{d2}_{e}")
                A(f"v_mfma_f32_16x16x32_bf16 {vr(ACC+4*nt,4)}, {vr(AR+4*(n % 4),4)}, {vr(BB+4*e,4)}, {vr(ACC+4*nt,4)}")
            if d2 < 7:
                rdB(7 - a, d2 + 1)
                if a == 7:
                    A(f"v_subrev_u32 {vr(vB)}, 64, {vr(vB)}")
    A(f"""
    v_and_b32 {vr(T)}, 15, {vr(V_LANE)}
    v_lshrrev_b32 {vr(T+1)}, 4, {vr(V_LANE)}
    v_lshlrev_b32 {vr(T+2)}, 5, {vr(T)}
    v_lshrrev_b32 {vr(T+3)}, 1, {vr(T+1)}
    v_lshl_add_u32 {vr(T+2)}, {vr(T+3)}, 4, {vr(T+2)}
    v_and_b32 {vr(T+3)}, 1, {vr(T+1)}
    v_xor_b32 {vr(T+3)}, 1, {vr(T+3)}
    v_lshl_add_u32 {vr(T+2)}, {vr(T+3)}, 3, {vr(T+2)}
    v_add_u32 {vr(T+2)}, {8320 + 512}, {vr(T+2)}
    v_add_u32 {vr(vU)}, {sr(sCB)}, {vr(T+2)}
    v_lshlrev_b32 {vr(T+2)}, 5, {vr(T)}
    v_lshl_add_u32 {vr(T+2)}, {vr(T+1)}, 3, {vr(T+2)}
    """)
    for nt in range(8):
        A.lds(f"ds_read_b64 {vr(BB+2*nt,2)}, {vr(vU)} offset:{512*nt}")
    A.lg_all()
    A(f"s_lshl_b32 {sr(S_T0)}, {sr(S_GCH)}, 12")
    A(f"s_add_u32 {sr(S_T0)}, {sr(S_T0)}, {YT}")
    for nt in range(8):
        d0, d1 = BB + 2 * nt, BB + 2 * nt + 1
        A(f"v_and_b32 {vr(T+4)}, 0xffff0000, {vr(d1)}")
        A(f"v_fmac_f32 {vr(ACC+4*nt)}, {sr(S_DV)}, {vr(T+4)}")
        A(f"v_lshlrev_b32 {vr(T+4)}, 16, {vr(d1)}")
        A(f"v_fmac_f32 {vr(ACC+4*nt+1)}, {sr(S_DV)}, {vr(T+4)}")
        A(f"v_and_b32 {vr(T+4)}, 0xffff0000, {vr(d0)}")
        A(f"v_fmac_f32 {vr(ACC+4*nt+2)}, {sr(S_DV)}, {vr(T+4)}")
        A(f"v_lshlrev_b32 {vr(T+4)}, 16, {vr(d0)}")
        A(f"v_fmac_f32 {vr(ACC+4*nt+3)}, {sr(S_DV)}, {vr(T+4)}")
        A(f"v_cvt_pk_bf16_f32 {vr(AR+2*(nt % 4))}, {vr(ACC+4*nt)}, {vr(ACC+4*nt+1)}")
        A(f"v_cvt_pk_bf16_f32 {vr(AR+2*(nt % 4)+1)}, {vr(ACC+4*nt+2)}, {vr(ACC+4*nt+3)}")
        A(f"buffer_store_dwordx2 {vr(AR+2*(nt % 4),2)}, {vr(T+2)}, {sr(S_WS,4)}, {sr(S_T0)} offen offset:{512*nt} sc1")
    A("s_waitcnt vmcnt(0)")
```

```python
from mk_base import *
from mk_p1 import (f32bits, signal_local_store, wait_local, spin_guard, tile_stats, store_xstat, reduce_G, div10_offset)

V_OF = 64
V_AC = 144
V_WA, V_WB = 164, 24
T3 = 44
S_P = S_U0 + 27


def wo_dma(A):
    T = T3
    A.srd(S_C, P_WO, 819200)
    A(f"v_mov_b32 {vr(T)}, {vr(V_LANE)}")
    for j in range(5):
        div10_offset(A, T + 2 + j, T, T + 1)
        if j < 4:
            A(f"v_add_u32 {vr(T)}, 64, {vr(T)}")
    A(f"s_mul_i32 {sr(S_T0)}, {sr(S_W)}, {160*1280}")
    A(f"s_mul_i32 {sr(S_T0+1)}, {sr(S_CG)}, 160")
    A(f"s_add_u32 {sr(S_T0)}, {sr(S_T0)}, {sr(S_T0+1)}")
    A(f"s_mul_i32 {sr(S_T0+1)}, {sr(S_W)}, 25600")
    for per in range(5):
        for j in range(5):
            A(f"s_add_u32 m0, {sr(S_T0+1)}, {L_WO + (per*5+j)*1024}")
            A(f"s_add_u32 {sr(S_T0+2)}, {sr(S_T0)}, {per*32*1280}")
            A(f"buffer_load_dwordx4 {vr(T+2+j)}, {sr(S_C,4)}, {sr(S_T0+2)} offen lds")


def signal_after_barrier(A, p_text, vtmp):
    lab = A.label("Lsg")
    A("s_waitcnt vmcnt(0)")
    A("s_barrier")
    A(f"s_cmp_eq_u32 {sr(S_W)}, 0")
    A(f"s_cbranch_scc0 {lab}")
    signal_local_store(A, p_text, vtmp)
    A(f"{lab}:")
    A.vm = []


def p3(A):
    T = T3
    A(f"s_mul_i32 {sr(S_P)}, {sr(S_LAYER)}, 3")
    A(f"s_add_u32 {sr(S_P)}, {sr(S_P)}, 3")
    signal_after_barrier(A, sr(S_P), T)
    wait_local(A, sr(S_P), T)
    A(f"s_lshl_b32 {sr(S_T0)}, {sr(S_RG)}, 2")
    A(f"s_add_u32 {sr(S_T0)}, {sr(S_T0)}, {sr(S_W)}")
    A(f"s_mul_i32 {sr(S_T0)}, {sr(S_T0)}, 20480")
    A(f"s_add_u32 {sr(S_T0)}, {sr(S_T0)}, {sr(S_GOFF)}")
    A(f"s_add_u32 {sr(S_T0)}, {sr(S_T0)}, {OF}")
    for s3 in range(20):
        if s3 % 4 == 0 and s3:
            A(f"s_add_u32 {sr(S_T0)}, {sr(S_T0)}, 4096")
        A.vmem(f"buffer_load_dwordx4 {vr(V_OF+4*s3,4)}, {vr(V_L16)}, {sr(S_WS,4)}, {sr(S_T0)} offen offset:{(s3 % 4)*1024} sc1", f"of{s3}")
    VFY = T + 2
    A(f"v_and_b32 {vr(T)}, 31, {vr(V_LANE)}")
    A(f"v_lshlrev_b32 {vr(T)}, 2, {vr(T)}")
    A(f"s_lshl_b32 {sr(S_T0+1)}, {sr(S_CG)}, 8")
    A(f"s_add_u32 {sr(S_T0+1)}, {sr(S_T0+1)}, {FLAGY}")
    A.vmem(f"buffer_load_dword {vr(VFY)}, {vr(T)}, {sr(S_WS,4)}, {sr(S_T0+1)} offen sc1", "fy")
    vW0, vW1 = T + 3, T + 4
    A(f"""
    v_lshrrev_b32 {vr(T)}, 4, {vr(V_LANE)}
    v_lshrrev_b32 {vr(T+1)}, 1, {vr(T)}
    v_lshlrev_b32 {vr(T+1)}, 4, {vr(T+1)}
    v_and_b32 {vr(T)}, 1, {vr(T)}
    v_lshl_add_u32 {vr(T+1)}, {vr(T)}, 2, {vr(T+1)}
    v_bfe_u32 {vr(T)}, {vr(V_LANE)}, 2, 2
    v_add_u32 {vr(T+1)}, {vr(T+1)}, {vr(T)}
    v_mul_u32_u24 {vr(T+1)}, 160, {vr(T+1)}
    v_and_b32 {vr(T)}, 3, {vr(V_LANE)}
    v_lshl_add_u32 {vr(T+1)}, {vr(T)}, 3, {vr(T+1)}
    v_add_u32 {vr(vW0)}, {L_WO}, {vr(T+1)}
    v_add_u32 {vr(vW1)}, {L_WO + 51200}, {vr(T+1)}
    """)
    for j in range(20):
        A(f"v_mov_b32 {vr(V_AC+j)}, 0")

    def wread(s3):
        buf = V_WA if s3 % 2 == 0 else V_WB
        base = vW0 if s3 < 10 else vW1
        o = (s3 % 10) * 5120
        for nt in range(5):
            for hh in range(2):
                A.lds(f"ds_read_b64_tr_b16 {vr(buf+4*nt+2*hh,2)}, {vr(base)} offset:{o + hh*1280 + 32*nt}", f"w{s3}_{nt}")
    YR = 96 - 32
    wread(0)
    ylab = A.label("Ly")
    for s3 in range(20):
        if s3 < 19:
            wread(s3 + 1)
        if s3 < 10:
            A.vm_wait(f"of{s3}")
        buf = V_WA if s3 % 2 == 0 else V_WB
        for nt in range(5):
            A.lg_wait_if(f"w{s3}_{nt}")
            A(f"v_mfma_f32_16x16x32_bf16 {vr(V_AC+4*nt,4)}, {vr(buf+4*nt,4)}, {vr(V_OF+4*s3,4)}, {vr(V_AC+4*nt,4)}")
        if s3 == 9:
            A.vm_all()
            A(f"s_cmp_eq_u32 {sr(S_LAYER)}, 0")
            A(f"s_cbranch_scc0 {ylab}_skip")
            A(f"v_cmp_eq_u32 vcc, 1, {vr(VFY)}")
            A(f"s_cmp_eq_u32 vcc_lo, -1")
            A(f"s_cbranch_scc1 {ylab}_ok")
            A(f"v_and_b32 {vr(T)}, 31, {vr(V_LANE)}")
            A(f"v_lshlrev_b32 {vr(T)}, 2, {vr(T)}")
            A(f"s_lshl_b32 {sr(S_T0+1)}, {sr(S_CG)}, 8")
            A(f"s_add_u32 {sr(S_T0+1)}, {sr(S_T0+1)}, {FLAGY}")
            A(f"s_mov_b32 {sr(S_SPIN)}, 0x40000")
            A(f"{ylab}_spin:")
            A(f"buffer_load_dword {vr(VFY)}, {vr(T)}, {sr(S_WS,4)}, {sr(S_T0+1)} offen sc1")
            A("s_waitcnt vmcnt(0)")
            A(f"v_cmp_eq_u32 vcc, 1, {vr(VFY)}")
            A(f"s_cmp_eq_u32 vcc_lo, -1")
            A(f"s_cbranch_scc1 {ylab}_ok")
            spin_guard(A, f"{ylab}_spin")
            A(f"{ylab}_ok:")
            A(f"v_lshrrev_b32 {vr(T)}, 4, {vr(V_LANE)}")
            A(f"v_lshlrev_b32 {vr(T)}, 14, {vr(T)}")
            A(f"v_and_b32 {vr(T+1)}, 15, {vr(V_LANE)}")
            A(f"v_lshl_add_u32 {vr(T)}, {vr(T+1)}, 1, {vr(T)}")
            A(f"s_mul_i32 {sr(S_T0)}, {sr(S_CG)}, {80*4096}")
            A(f"s_lshl_b32 {sr(S_T0+1)}, {sr(S_G)}, 9")
            A(f"s_add_u32 {sr(S_T0)}, {sr(S_T0)}, {sr(S_T0+1)}")
            A(f"s_lshl_b32 {sr(S_T0+1)}, {sr(S_RG)}, 7")
            A(f"s_add_u32 {sr(S_T0)}, {sr(S_T0)}, {sr(S_T0+1)}")
            A(f"s_lshl_b32 {sr(S_T0+1)}, {sr(S_W)}, 5")
            A(f"s_add_u32 {sr(S_T0)}, {sr(S_T0)}, {sr(S_T0+1)}")
            A(f"s_add_u32 {sr(S_T0)}, {sr(S_T0)}, {YT}")
            for nt in range(5):
                for r in range(4):
                    A(f"s_add_u32 {sr(S_T0+1)}, {sr(S_T0)}, {(16*nt + r)*4096}")
                    A(f"buffer_load_ushort {vr(V_OF+4*nt+r)}, {vr(T)}, {sr(S_WS,4)}, {sr(S_T0+1)} offen sc1")
            A(f"{ylab}_skip:")
    for j in range(10):
        A(f"v_lshlrev_b32 {vr(T)}, 16, {vr(V_XT+j)}")
        A(f"v_and_b32 {vr(T+1)}, 0xffff0000, {vr(V_XT+j)}")
        A(f"v_add_f32 {vr(T)}, {vr(T)}, {vr(V_AC+2*j)}")
        A(f"v_add_f32 {vr(T+1)}, {vr(T+1)}, {vr(V_AC+2*j+1)}")
        A(f"v_cvt_pk_bf16_f32 {vr(V_XT+j)}, {vr(T)}, {vr(T+1)}")
    tile_stats(A, T + 2, T + 3, T + 4)
    store_xstat(A, 1, T + 2, T + 6, "xs", by_layer=True)
    A(f"s_add_u32 {sr(S_P)}, {sr(S_P)}, 1")
    signal_after_barrier(A, sr(S_P), T)
    A(f"s_cmp_eq_u32 {sr(S_LAYER)}, 0")
    A(f"s_cbranch_scc0 {ylab}_nopack")
    for j in range(10):
        A(f"v_lshl_or_b32 {vr(V_YT+j)}, {vr(V_OF+2*j+1)}, 16, {vr(V_OF+2*j)}")
    A(f"{ylab}_nopack:")
    wait_local(A, sr(S_P), T, rg_only=True)
    A(f"s_lshl_b32 {sr(S_T0)}, {sr(S_G)}, 14")
    A(f"s_lshl_b32 {sr(S_T0+1)}, {sr(S_RG)}, 12")
    A(f"s_add_u32 {sr(S_T0)}, {sr(S_T0)}, {sr(S_T0+1)}")
    A(f"s_lshl_b32 {sr(S_T0+1)}, {sr(S_W)}, 10")
    A(f"s_add_u32 {sr(S_T0)}, {sr(S_T0)}, {sr(S_T0+1)}")
    A(f"s_lshl_b32 {sr(S_T0+1)}, {sr(S_LAYER)}, 18")
    A(f"s_add_u32 {sr(S_T0)}, {sr(S_T0)}, {sr(S_T0+1)}")
    A(f"s_add_u32 {sr(S_T0)}, {sr(S_T0)}, {XSTAT + 131072}")
    A(f"v_and_b32 {vr(T)}, 15, {vr(V_LANE)}")
    A(f"v_lshlrev_b32 {vr(T)}, 6, {vr(T)}")
    A(f"v_lshrrev_b32 {vr(T+1)}, 4, {vr(V_LANE)}")
    A(f"v_lshl_add_u32 {vr(T)}, {vr(T+1)}, 4, {vr(T)}")
    A(f"buffer_load_dwordx4 {vr(T+4,4)}, {vr(T)}, {sr(S_WS,4)}, {sr(S_T0)} offen sc1")
    A("s_waitcnt vmcnt(0)")
    A(f"v_add_f32 {vr(T+4)}, {vr(T+4)}, {vr(T+6)}")
    A(f"v_add_f32 {vr(T+5)}, {vr(T+5)}, {vr(T+7)}")
    reduce_G(A, [T + 4, T + 5], T, T + 1)
    MM, SC = T + 8, T + 10
    A(f"v_mul_f32 {vr(T+4)}, {f32bits(1/640):#x}, {vr(T+4)}")
    A(f"v_mul_f32 {vr(T+5)}, {f32bits(1/640):#x}, {vr(T+5)}")
    A(f"v_fma_f32 {vr(T+5)}, -{vr(T+4)}, {vr(T+4)}, {vr(T+5)}")
    A(f"v_max_f32 {vr(T+5)}, 0, {vr(T+5)}")
    A(f"v_add_f32 {vr(T+5)}, {f32bits(1e-5):#x}, {vr(T+5)}")
    A(f"v_rsq_f32 {vr(SC)}, {vr(T+5)}")
    A(f"v_sub_f32 {vr(MM)}, 0, {vr(T+4)}")
    A(f"v_mov_b32 {vr(MM+1)}, {vr(MM)}")
    A(f"v_mov_b32 {vr(SC+1)}, {vr(SC)}")
    X, Y, U = T, T + 2, T + 4
    for j in range(10):
        A(f"v_lshlrev_b32 {vr(X)}, 16, {vr(V_XT+j)}")
        A(f"v_and_b32 {vr(X+1)}, 0xffff0000, {vr(V_XT+j)}")
        A(f"v_lshlrev_b32 {vr(Y)}, 16, {vr(V_YT+j)}")
        A(f"v_and_b32 {vr(Y+1)}, 0xffff0000, {vr(V_YT+j)}")
        A(f"v_pk_add_f32 {vr(U,2)}, {vr(X,2)}, {vr(MM,2)}")
        A(f"v_pk_mul_f32 {vr(U,2)}, {vr(U,2)}, {vr(SC,2)}")
        A(f"v_pk_fma_f32 {vr(U,2)}, {vr(U,2)}, {vr(Y,2)}, {vr(X,2)}")
        A(f"v_cvt_pk_bf16_f32 {vr(V_XT+j)}, {vr(U)}, {vr(U+1)}")
    A(f"s_cmp_eq_u32 {sr(S_LAYER)}, 0")
    A("s_cbranch_scc0 L_final")
    tile_stats(A, T + 2, T + 3, T + 4)
    store_xstat(A, 2, T + 2, T + 6, "xs")
    A(f"""
    v_lshrrev_b32 {vr(T)}, 4, {vr(V_LANE)}
    v_lshrrev_b32 {vr(T+1)}, 1, {vr(T)}
    v_lshlrev_b32 {vr(T+1)}, 9, {vr(T+1)}
    v_and_b32 {vr(T)}, 1, {vr(T)}
    v_lshl_add_u32 {vr(T+1)}, {vr(T)}, 3, {vr(T+1)}
    v_and_b32 {vr(T)}, 15, {vr(V_LANE)}
    v_lshl_add_u32 {vr(T+1)}, {vr(T)}, 4, {vr(T+1)}
    s_lshl_b32 {sr(S_T0)}, {sr(S_RG)}, 1
    s_lshr_b32 {sr(S_T0+1)}, {sr(S_W)}, 1
    s_add_u32 {sr(S_T0)}, {sr(S_T0)}, {sr(S_T0+1)}
    s_mul_i32 {sr(S_T0)}, {sr(S_T0)}, 40
    s_mul_i32 {sr(S_T0+1)}, {sr(S_CG)}, 5
    s_add_u32 {sr(S_T0)}, {sr(S_T0)}, {sr(S_T0+1)}
    s_lshl_b32 {sr(S_T0)}, {sr(S_T0)}, 10
    s_and_b32 {sr(S_T0+1)}, {sr(S_W)}, 1
    s_lshl_b32 {sr(S_T0+1)}, {sr(S_T0+1)}, 8
    s_add_u32 {sr(S_T0)}, {sr(S_T0)}, {sr(S_T0+1)}
    s_add_u32 {sr(S_T0)}, {sr(S_T0)}, {sr(S_GOFF)}
    s_add_u32 {sr(S_T0)}, {sr(S_T0)}, {XF}
    s_add_u32 {sr(S_T0+1)}, {sr(S_T0)}, 4096
    """)
    for nt in range(4):
        A(f"buffer_store_dwordx2 {vr(V_XT+2*nt,2)}, {vr(T+1)}, {sr(S_WS,4)}, {sr(S_T0)} offen offset:{nt*1024}")
    A(f"buffer_store_dwordx2 {vr(V_XT+8,2)}, {vr(T+1)}, {sr(S_WS,4)}, {sr(S_T0+1)} offen")
    signal_after_barrier(A, "5", T)
    wait_local(A, "5", T)


def final_store(A):
    T = T3
    A("L_final:")
    A(f"""
    v_and_b32 {vr(T)}, 15, {vr(V_LANE)}
    v_mul_u32_u24 {vr(T)}, 160, {vr(T)}
    v_lshrrev_b32 {vr(T+1)}, 4, {vr(V_LANE)}
    v_lshl_add_u32 {vr(T)}, {vr(T+1)}, 3, {vr(T)}
    s_lshl_b32 {sr(S_T0)}, {sr(S_W)}, 12
    v_add_u32 {vr(T)}, {sr(S_T0)}, {vr(T)}
    """)
    for nt in range(5):
        A(f"ds_write_b64 {vr(T)}, {vr(V_XT+2*nt,2)} offset:{32*nt}")
    A(f"v_add_u32 {vr(T+1)}, {sr(S_T0)}, {vr(V_L16)}")
    A("s_waitcnt lgkmcnt(0)")
    for j in range(3):
        A(f"ds_read_b128 {vr(64+4*j,4)}, {vr(T+1)} offset:{1024*j}")
    A.srd(S_A, P_OUT, 2621440)
    A(f"s_lshl_b32 {sr(S_T0)}, {sr(S_G)}, 8")
    A(f"s_lshl_b32 {sr(S_T0+1)}, {sr(S_RG)}, 6")
    A(f"s_add_u32 {sr(S_T0)}, {sr(S_T0)}, {sr(S_T0+1)}")
    A(f"s_lshl_b32 {sr(S_T0+1)}, {sr(S_W)}, 4")
    A(f"s_add_u32 {sr(S_T0)}, {sr(S_T0)}, {sr(S_T0+1)}")
    A(f"s_mul_i32 {sr(S_T0)}, {sr(S_T0)}, 1280")
    A(f"s_mul_i32 {sr(S_T0+1)}, {sr(S_CG)}, 160")
    A(f"s_add_u32 {sr(S_T0)}, {sr(S_T0)}, {sr(S_T0+1)}")
    A(f"v_mov_b32 {vr(T+2)}, {vr(V_LANE)}")
    for j in range(3):
        div10_offset(A, T + 4 + j, T + 2, T + 3)
        if j < 2:
            A(f"v_add_u32 {vr(T+2)}, 64, {vr(T+2)}")
    A("s_waitcnt lgkmcnt(0)")
    A(f"buffer_store_dwordx4 {vr(64,4)}, {vr(T+4)}, {sr(S_A,4)}, {sr(S_T0)} offen")
    A(f"buffer_store_dwordx4 {vr(68,4)}, {vr(T+5)}, {sr(S_A,4)}, {sr(S_T0)} offen")
    A("s_mov_b32 exec_hi, 0")
    A(f"buffer_store_dwordx4 {vr(72,4)}, {vr(T+6)}, {sr(S_A,4)}, {sr(S_T0)} offen")
    A("s_mov_b32 exec_hi, -1")
```

```python
import sys
from mk_base import *
import mk_p1, mk_p2, mk_p3
import hazard


def layer0_middle(A):
    T = 46
    A("s_barrier")
    mk_p2.kv_prepare(A)
    mk_p3.signal_after_barrier(A, "2", T)
    A(f"s_cmp_lt_u32 {sr(S_W)}, {sr(mk_p1.S_NCH)}")
    A("s_cbranch_scc0 L_noconv")
    mk_p1.wait_local(A, "2", T)
    mk_p2.conv_run(A)
    A("L_noconv:")
    A(f"s_cmp_eq_u32 {sr(S_W)}, 3")
    A("s_cbranch_scc0 L_nohf")
    A(f"s_cmp_eq_u32 {sr(S_G)}, 0")
    A("s_cbranch_scc1 L_nohf")
    mk_p2.halo_fetch(A, 24, 0)
    A("s_waitcnt vmcnt(0)")
    A("L_nohf:")
    A("s_barrier")
    A(f"s_cmp_eq_u32 {sr(S_W)}, 0")
    A("s_cbranch_scc0 L_noysig")
    A(f"s_lshl_b32 {sr(S_T0)}, {sr(S_G)}, 8")
    A(f"s_lshl_b32 {sr(S_T0+1)}, {sr(S_R)}, 2")
    A(f"s_add_u32 {sr(S_T0)}, {sr(S_T0)}, {sr(S_T0+1)}")
    A(f"s_add_u32 {sr(S_T0)}, {sr(S_T0)}, {FLAGY}")
    A(f"v_mov_b32 {vr(T)}, 1")
    A(f"v_mov_b32 {vr(T+1)}, 0")
    A("s_mov_b64 exec, 1")
    A(f"buffer_store_dword {vr(T)}, {vr(T+1)}, {sr(S_WS,4)}, {sr(S_T0)} offen sc1")
    A("s_mov_b64 exec, -1")
    A("L_noysig:")
    mk_p3.wo_dma(A)


def build(stop=None, force_slow=False, halo_all=False):
    mk_p1.FORCE_SLOW = force_slow
    mk_p1.DEBUG_HALO_ALL = halo_all
    A = G()
    mk_p1.entry(A)
    mk_p1.p0_p1(A)
    A("L_epi:")
    mk_p1.qkv_epilogue(A)
    mk_p2.attention_own(A)
    A(f"s_cmp_eq_u32 {sr(S_LAYER)}, 0")
    A("s_cbranch_scc0 L_mid1")
    layer0_middle(A)
    A("s_branch L_mid_done")
    A("L_mid1:")
    A(f"s_cmp_eq_u32 {sr(S_G)}, 0")
    A("s_cbranch_scc1 L_mid_done")
    mk_p2.halo_fetch(A, 6, None)
    A("s_waitcnt vmcnt(0)")
    A("s_barrier")
    A("L_mid_done:")
    A(f"s_cmp_eq_u32 {sr(S_G)}, 0")
    A("s_cbranch_scc1 L_nohalo")
    mk_p2.attention_halo(A)
    A("L_nohalo:")
    mk_p2.attention_finish(A)
    mk_p3.p3(A)
    A.vm = []
    mk_p1.p4_gemm(A)
    A(f"s_mov_b32 {sr(S_LAYER)}, 1")
    A("s_branch L_epi")
    mk_p3.final_store(A)
    A("L_end:")
    A("s_endpgm")
    mk_p2.fallback_code(A)
    lines, nn = hazard.run(A.lines)
    head = open("cdna_kernels/" + NAME.replace("_kernel", "") + ".s.ref").read().split("\n")
    hdr = [l for l in head if l.startswith(";") and "@launch" not in l and "Override launch" not in l and "grid=ceil" not in l]
    hdr = hdr[:hdr.index([l for l in hdr if "d_ws" in l and "offset" in l][0]) + 1]
    txt = "\n".join(hdr) + "\n"
    txt += f"; @launch grid=(256,1,1) block=(256,1,1) lds={LDS_BYTES}\n"
    txt += '.amdgcn_target "amdgcn-amd-amdhsa--gfx950"\n'
    txt += kernel_header(NAME) + "\n".join(lines) + "\n" + kernel_desc(NAME, 512, 256)
    return txt, nn


if __name__ == "__main__":
    import build as bld
    out = sys.argv[1] if len(sys.argv) > 1 else "k.s"
    kw = {}
    for a in sys.argv[2:]:
        k, v = a.split("=")
        kw[k] = int(v)
    txt, nn = build(**kw)
    open(out, "w").write(txt)
    print("lines", txt.count("\n"), "nops", nn)
    bld.build(out, NAME)
    import subprocess
    r = subprocess.run(["llvm-readelf", "-S", out.replace(".s", ".co")], capture_output=True, text=True)
    for l in r.stdout.split("\n"):
        if ".text" in l:
            print(l)
```
